```python
import torch

def _softmax(x, axis=-1):
    return torch.softmax(x, dim=axis)
def _gelu(x):
    return torch.nn.functional.gelu(x, approximate="tanh")
def _silu(x):
    return torch.nn.functional.silu(x)
def _sigmoid(x):
    return torch.sigmoid(x)
def _layernorm(x, axis=-1, eps=1e-5):
    m = x.mean(dim=axis, keepdim=True)
    v = x.var(dim=axis, keepdim=True, unbiased=False)
    return (x - m) / torch.sqrt(v + eps)
def _scatter_add(tgt, idx, src, axis=0):
    return tgt.clone().index_add_(axis, idx, src)
def _segment_sum(src, seg, n):
    out = torch.zeros((n,) + src.shape[1:], dtype=src.dtype)
    return out.index_add_(0, seg, src)
def _pad(x, pw):
    flat = tuple(v for pair in reversed(pw) for v in pair)
    return torch.nn.functional.pad(x, flat)

kernel_name = 'parallel_sum__ssm_conv_h3__dense_activation_gelu__prompt'

def setup_inputs():

    _w = (lambda a: (lambda t: t.to(torch.bfloat16) if t.is_floating_point() else t)(torch.as_tensor(a)))
    def _A_setup():
        B, S, D = 1, 2048, 576
        ks = 4
        return {
            "q": _w((lambda *s: torch.randn(*s, dtype=torch.bfloat16) * 0.05)(B, S, D)),
            "k": _w((lambda *s: torch.randn(*s, dtype=torch.bfloat16) * 0.2)(B, S, D)),
            "v": _w((lambda *s: torch.randn(*s, dtype=torch.bfloat16) * 0.2)(B, S, D)),
            "shift_k": _w((lambda *s: torch.randn(*s, dtype=torch.bfloat16) * 0.2)(D, ks) * 0.5),
            "ssm_k": _w((lambda *s: torch.randn(*s, dtype=torch.bfloat16) * 0.8)(D, S) * (1.0 / S ** 0.5)),
            "ssm_D": _w((lambda *s: torch.randn(*s, dtype=torch.bfloat16) * 0.2)(D)),
        }
    _A_in = _A_setup()

    def _B_setup():
        B, S, D, F = 1, 2048, 576, 4608
        return {
            "x": _w((lambda *s: torch.randn(*s, dtype=torch.bfloat16) * 0.05)(B, S, D)),
            "w1": _w((lambda *s: torch.randn(*s, dtype=torch.bfloat16) * 0.4)(D, F) * (D ** -0.5)),
            "b1": _w((lambda *s: torch.randn(*s, dtype=torch.bfloat16) * 12.8)(F) * 0.01),
            "w2": _w((lambda *s: torch.randn(*s, dtype=torch.bfloat16) * 0.2)(F, D) * (F ** -0.5)),
            "b2": _w((lambda *s: torch.randn(*s, dtype=torch.bfloat16) * 1.6)(D) * 0.01),
        }
    _B_in = _B_setup()

    return {
        "A_q": _A_in["q"],
        "A_k": _A_in["k"],
        "A_v": _A_in["v"],
        "A_shift_k": _A_in["shift_k"],
        "A_ssm_k": _A_in["ssm_k"],
        "A_ssm_D": _A_in["ssm_D"],
        "B_x": _B_in["x"],
        "B_w1": _B_in["w1"],
        "B_b1": _B_in["b1"],
        "B_w2": _B_in["w2"],
        "B_b2": _B_in["b2"],
    }

def reference(A_q, A_k, A_v, A_shift_k, A_ssm_k, A_ssm_D, B_x, B_w1, B_b1, B_w2, B_b2):
    def _A_ref(q, k, v, shift_k, ssm_k, ssm_D):
        B, S, D = q.shape
        ks = shift_k.shape[-1]
        k_pad = _pad(k, ((0, 0), (ks - 1, 0), (0, 0)))
        k_shift = torch.zeros_like(k)
        for t in range(ks):
            k_shift = k_shift + k_pad[:, t:t + S, :] * shift_k[:, ks - 1 - t][None, None, :]
        kv = k_shift * v
        L = 2 * S
        kv_pad = _pad(kv, ((0, 0), (0, S), (0, 0)))
        kf_pad = _pad(ssm_k, ((0, 0), (0, S)))
        kv_f = (lambda x, axes=(-2,-1): torch.fft.rfft2(x.float(), dim=axes))(kv_pad[:, None, :, :], axes=(1, 2))
        kf_f = (lambda x, axes=(-2,-1): torch.fft.rfft2(x.float(), dim=axes))(kf_pad[:, None, :], axes=(1, 2))
        kf_f = (lambda x, *d: x.permute(*d))(kf_f, 1, 2, 0)
        y_f = kv_f * kf_f[None, :, :, :]
        y = (lambda x, s, axes=(-2,-1): torch.fft.irfft2(x, s=s, dim=axes).to(torch.bfloat16))(y_f, (1, L), axes=(1, 2))[:, 0, :S, :]
        y = y + kv * ssm_D[None, None, :]
        return q * y

    def _B_ref(x, w1, b1, w2, b2):
        h = torch.einsum("bsd,df->bsf", x, w1) + b1
        h = _gelu(h)
        return torch.einsum("bsf,fd->bsd", h, w2) + b2

    x = A_q
    xn = _layernorm(x, axis=-1)
    return x + _A_ref(xn, A_k, A_v, A_shift_k, A_ssm_k, A_ssm_D) + _B_ref(xn, B_w1, B_b1, B_w2, B_b2)
```

```python
import re, copy
BIG = 1 << 20

class Em:
    def __init__(s):
        s.L = []; s.vm = BIG; s.vmd = BIG; s.lg = BIG; s.lgd = BIG; s.tv = {}; s.tl = {}; s.nbar = 0
    def fork(s):
        n = Em(); n.vm, n.vmd, n.lg, n.lgd = s.vm, s.vmd, s.lg, s.lgd
        n.tv = dict(s.tv); n.tl = dict(s.tl); n.nbar = s.nbar
        return n
    @staticmethod
    def merge(paths):
        n = Em(); assert len({p.nbar for p in paths}) == 1, [p.nbar for p in paths]
        n.nbar = paths[0].nbar
        def mg(get):
            out = {}
            keys = set()
            for p in paths: keys |= set(get(p)[0].keys())
            for k in keys:
                y = None
                for p in paths:
                    t, cur, done = get(p)
                    if k in t and t[k] > done:
                        v = cur - t[k]; y = v if y is None else min(y, v)
                out[k] = 0 if y is None else 2 * BIG - y
            return out
        n.tv = mg(lambda p: (p.tv, p.vm, p.vmd)); n.tl = mg(lambda p: (p.tl, p.lg, p.lgd))
        n.vm = n.lg = 2 * BIG; n.vmd = n.lgd = 1
        return n
    def A(s, t): s.L.append(t)
    def vmop(s, t, tag=None):
        s.L.append(t); s.vm += 1
        if tag: s.tv[tag] = s.vm
    def dsop(s, t, tag=None):
        s.L.append(t); s.lg += 1
        if tag: s.tl[tag] = s.lg
    def wait(s, vt=None, lt=None):
        parts = []
        if vt is not None:
            vts = vt if isinstance(vt, (list, tuple)) else [vt]
            x = max((s.vm if t == 'ALL' else s.tv[t]) for t in vts)
            if x > s.vmd:
                n = min(63, s.vm - x); parts.append(f"vmcnt({n})"); s.vmd = s.vm - n
        if lt is not None:
            lts = lt if isinstance(lt, (list, tuple)) else [lt]
            x = max((s.lg if t == 'ALL' else s.tl[t]) for t in lts)
            if x > s.lgd:
                n = min(15, s.lg - x); parts.append(f"lgkmcnt({n})"); s.lgd = s.lg - n
        if parts: s.L.append("s_waitcnt " + " ".join(parts)); return True
        return False
    def bar(s): s.L.append("s_barrier"); s.nbar += 1
    def item(s, it):
        k = it[0]
        if k == 'v' or k == 's': s.A(it[1])
        elif k == 'vm': s.vmop(it[1], it[2] if len(it) > 2 else None)
        elif k == 'ds': s.dsop(it[1], it[2] if len(it) > 2 else None)
        elif k == 'w': s.wait(it[1], it[2] if len(it) > 2 else None)
        elif k == 'bar': s.bar()
        elif k == 'fn': it[1](s)
        elif k == 'grp':
            for x in it[1]: s.item(x)
        elif k == 'hold': pass
        else: raise ValueError(it)
    def items(s, its):
        for it in its: s.item(it)

TRANS = ('v_exp_', 'v_rcp_', 'v_rsq_', 'v_sqrt_', 'v_log_')
def V(t): return ('v', t, 8 if t.startswith(TRANS) else 4)
def S(t): return ('s', t)
def VM(t, tag=None): return ('vm', t, tag)
def DS(t, tag=None): return ('ds', t, tag)
def W(vt=None, lt=None): return ('w', vt, lt)
def HOLD(gap): return ('hold', gap)

class Step:
    def __init__(s, mf):
        s.mf = mf; s.top = []; s.gaps = [[] for _ in mf]
    def heavy(s, i): return sum(1 for x in s.gaps[i] if x[0] in ('vm', 'ds', 'grp'))
    def place(s, its, lo=0, hi=None):
        hi = len(s.mf) if hi is None else hi
        cnt = {i: s.heavy(i) for i in range(lo, hi)}
        pos = []
        for _ in its:
            i = min(cnt, key=lambda i: (cnt[i], any(x[0] == 'vm' for x in s.gaps[i]), -i)); cnt[i] += 1; pos.append(i)
        for it, i in zip(its, sorted(pos)): s.gaps[i].append(it)

def run_steps(e, steps, fill, b_full=8, b_empty=12, b_dma=8, flush=True):
    g = 0; carry = 0
    for st in steps:
        e.items(st.top)
        for i, m in enumerate(st.mf):
            e.A(m)
            its = st.gaps[i]
            e.items(its)
            hv = st.heavy(i)
            while fill and fill[0][0] != 'v':
                h = fill[0]
                if h[0] == 'hold':
                    if g < h[1]: break
                    fill.pop(0); continue
                if h[0] in ('vm', 'ds', 'grp', 'fn'):
                    if hv >= 1 and not getattr(st, 'force', False) and carry < 2:
                        carry += 1; break
                    hv += 1; carry = 0
                e.item(fill.pop(0))
            bud = b_empty if not its and hv == 0 else (b_dma if any(x[0] == 'vm' for x in its) else b_full)
            if hv >= 2: bud = min(bud, 4)
            while fill and fill[0][0] == 'v' and fill[0][2] <= bud:
                bud -= fill[0][2]; e.item(fill.pop(0))
            g += 1
    if flush:
        while fill: e.item(fill.pop(0))

RX = re.compile(r'(-?)\b([vas])(\d+)\b|\b([vas])\[(\d+):(\d+)\]|\b(vcc|m0|exec)\b')
def regs(op):
    out = set()
    for m in RX.finditer(op):
        if m.group(2): out.add((m.group(2), int(m.group(3))))
        elif m.group(4):
            for r in range(int(m.group(5)), int(m.group(6)) + 1): out.add((m.group(4), r))
        else: out.add(('s', m.group(7)))
    return out
def parse(line):
    line = line.split(';')[0].strip()
    if not line or line.endswith(':') or line.startswith('.'): return None
    p = line.split(None, 1); op = p[0]
    ops = [x.strip() for x in re.split(r',\s*(?![^\[]*\])', p[1])] if len(p) > 1 else []
    d = dict(op=op, w=set(), r=set(), cls='s', txt=line)
    if op.startswith('v_mfma'):
        d.update(cls='mfma', w=regs(ops[0]), ab=regs(ops[1]) | regs(ops[2]), c=regs(ops[3])); d['r'] = d['ab'] | d['c']
    elif op.startswith('v_'):
        d['cls'] = 'valu'; d['w'] = regs(ops[0])
        for o in ops[1:]: d['r'] |= regs(o)
        if op.startswith(('v_permlane',)): d['w'] |= regs(ops[1]); d['r'] |= regs(ops[0])
        if op.startswith(('v_dot2c', 'v_fmac', 'v_mac')): d['r'] |= d['w']
        if op.startswith('v_cndmask') and len(ops) == 3: d['r'].add(('s', 'vcc'))
    elif op.startswith('buffer_') or op.startswith('global_'):
        d['cls'] = 'vmem'
        lds = re.search(r'\blds\b', line) is not None
        d['lds'] = lds
        if 'store' in op or lds:
            for o in ops: d['r'] |= regs(o)
            if 'store' in op: d['data'] = regs(ops[0])
            if lds: d['r'].add(('s', 'm0'))
        else:
            d['w'] = regs(ops[0])
            for o in ops[1:]: d['r'] |= regs(o)
    elif op.startswith('ds_'):
        d['cls'] = 'ds'
        if 'read' in op:
            d['w'] = regs(ops[0])
            for o in ops[1:]: d['r'] |= regs(o)
        else:
            for o in ops: d['r'] |= regs(o)
    elif op.startswith('s_'):
        if op.startswith(('s_cmp', 's_waitcnt', 's_nop', 's_barrier', 's_cbranch', 's_branch', 's_endpgm', 's_setprio', 's_sleep')):
            for o in ops: d['r'] |= regs(o)
        else:
            d['w'] = regs(ops[0]) if ops else set()
            for o in ops[1:]: d['r'] |= regs(o)
    return d
def isv(rs): return {r for r in rs if r[0] in 'va'}
def iss(rs): return {r for r in rs if r[0] == 's'}
def check(lines, name=""):
    ins = [x for x in (parse(l) for l in lines) if x]
    errs = []
    for i, c in enumerate(ins):
        dist = 0
        for k in range(i - 1, max(-1, i - 12), -1):
            p = ins[k]; need = 0; why = ''
            def rq(n, y):
                nonlocal need, why
                if n > need: need, why = n, y
            if p['cls'] == 'valu':
                dl = p['op'].startswith('v_dot')
                if c['cls'] == 'mfma' and isv(p['w']) & c['r']: rq(3 if dl else 2, 'valu->mfma')
                if dl and c['cls'] != 's' and isv(p['w']) & (c['r'] | c['w']):
                    if not (c['op'] == p['op'] and p['w'] == c['w']): rq(3, 'dot->other')
                if p['op'].startswith(TRANS) and c['cls'] == 'valu' and p['w'] & c['r']: rq(1, 'trans')
                if c['cls'] == 'valu' and c['op'].startswith(('v_readfirstlane', 'v_readlane')) and isv(p['w']) & c['r']: rq(1, 'rfl')
                if c['cls'] == 'valu' and iss(p['w']) & c['r']: rq(2, 'vsgpr->valu')
                if c['cls'] == 'vmem' and iss(p['w']) & c['r']: rq(5, 'vsgpr->vmem')
                if c['cls'] == 'valu' and ('dpp' in c['op'] or 'quad_perm' in c['txt'] or c['op'].startswith('v_permlane')) and isv(p['w']) & c['r']: rq(2, 'valu->dpp')
            if p['cls'] == 'mfma':
                if c['cls'] == 'mfma':
                    if p['w'] & c['ab']: rq(8, 'mfma->ab')
                    if p['w'] & c['c'] and p['w'] != c['c']: rq(6, 'mfma->c overlap')
                    if p['w'] & c['w'] and p['w'] != c['c']: rq(6, 'mfma waw')
                elif p['w'] & (c['r'] | c['w']): rq(8, 'mfma->rd/wr')
                if c['cls'] == 'valu' and p['c'] & c['w']: rq(3, 'srcC war')
            if p['cls'] == 'vmem' and 'data' in p and len(p['data']) > 2 and p['data'] & c['w']: rq(2, 'store war')
            if p['cls'] == 's' and ('s', 'm0') in p['w'] and c['cls'] == 'vmem' and c.get('lds'): rq(1, 'm0')
            if need > dist: errs.append(f"{name}: {why} need {need} have {dist}: [{p['txt']}] -> [{c['txt']}]")
            dist += (int(p['txt'].split()[1]) + 1) if p['op'] == 's_nop' else 1
    return errs
```

```python
import sys, struct, math
from fw import *
NAME = "parallel_sum__ssm_conv_h3__dense_activation_gelu__prompt_kernel"
def f2u(x): return struct.unpack("<I", struct.pack("<f", x))[0]
KC = 2 * math.sqrt(2 / math.pi) * math.log2(math.e)
AC = (KC * 0.044715) ** (1 / 3); BETA = KC / AC
GA0, TA0, KV0, Y0, P0 = 1024, 16384, 0x100000, 0x400000, 0x800000
TAGC = 0x9E3779B9
OOB = 0x80000000
RG0, RGS = 73728, 22528
SL0, FP, GB, STATS = 256, 4160, 16640, 73728 + 21248
sW, sT, sJ, sR, sTAG = "s3", "s4", "s5", "s6", "s7"
X, K_, V_, W1, W2, WS, OUT, SSM, B1, B2, SH = [f"s[{a}:{a+3}]" for a in range(8, 52, 4)]
sSO, sW1B, sG1, sG2, sGO = "s57", "s58", "s59", "s60", "s61"
sNB, sA, sMK, sIA = "s62", "s63", "s64", "s65"
sC, sCL, sHC = "s66", "s67", "s68"
sBI = "s69"
sCNT = "s82"
sPB1, sPB2, sFL1, sFL2, sXO = "s83", "s84", "s85", "s86", "s87"
t0s, t1s, t2s, t3s, t4s = "s70", "s71", "s72", "s73", "s74"
vW1, vW2, vTR, vXH, vXH2, vL, vF0 = 0, 4, 8, 12, 13, 14, 15
BIAS, BRAW, GT = 16, 32, 40
vFX, vFXA, vHW = 44, 46, 47
ACC = (64, 128); WB = 192
def qreg(i):
    r = i * 4
    return f"a[{r}:{r+3}]" if r < 256 else f"v[{224 + r - 256}:{224 + r - 256 + 3}]"
def v4(r): return f"v[{r}:{r+3}]"
def v2(r): return f"v[{r}:{r+1}]"
def a4(r): return f"a[{r}:{r+3}]"
BORD = [0, 3, 5, 7, 1, 4, 6, 8, 2]
KSB = [2 * s + h for s in BORD for h in (0, 1)]
MF = "v_mfma_f32_16x16x32_bf16"

class G:
    def __init__(g, **o):
        g.o = dict(npre=5, dbg=False, stop=None, ts=False); g.o.update(o)
        g.ool = []; g.lab = 0
    def label(g, p="L"):
        g.lab += 1; return f"{p}{g.lab}"

    def slot(g, step): return SL0 + ((step + 4) % 5) * 4096
    def dma_w(g, step):
        if step < 54:
            u, ks = divmod(step, 18); srd, vb, sb, off = W1, vW1, sW1B, u * 128 + ks * 32 * 9216
        else:
            u, b = divmod(step - 54, 18); srd, vb, sb, off = W2, vW2, (sG1, sG2)[u], KSB[b] * 32 * 1152
        return ([S(f"s_add_u32 m0, {sR}, {g.slot(step)}"), S(f"s_add_u32 {sSO}, {sb}, {off}")],
                [VM(f"buffer_load_dwordx4 v{vb+m}, {srd}, {sSO} offen offset:{1024*m} lds", f"D{step}") for m in range(4)])
    def dma_f(g, m):
        return ([S(f"s_add_u32 m0, {sR}, {FP*(m-1)+32}"), S(f"s_add_u32 {sSO}, {t4s}, {2*m}")],
                [VM(f"buffer_load_dwordx4 v48, {SSM}, {sSO} offen offset:{1024*p} lds", f"F{m}") for p in range(4)])
    def tr(g, step):
        p = step & 1; it = []
        for t in range(4):
            r = WB + p * 16 + t * 4
            it.append(DS(f"ds_read_b64_tr_b16 {v2(r)}, v{vTR+t} offset:{g.slot(step)}", f"T{step}"))
            it.append(DS(f"ds_read_b64_tr_b16 {v2(r+2)}, v{vTR+t} offset:{g.slot(step)+2048}", f"T{step}"))
        return it
    def fragread(g, slot, ks, tag):
        it = []
        for nt in range(4):
            f = ks * 4 + nt
            a, off = (vXH, f * 1024) if f < 64 else (vXH2, (f - 64) * 1024)
            it.append(DS(f"ds_read_b128 {qreg(slot*4+nt)}, v{a} offset:{off}", tag))
        return it
    def gemm_step(g, step, slotq, acc, first, dmas, nxt=True, extra_lt=()):
        p = step & 1; mf = []
        for t in range(4):
            for nt in range(4):
                d = v4(acc + (t * 4 + nt) * 4)
                c = d if not first else (v4(BIAS + 4 * t) if first == 'bias' else "0")
                mf.append(f"{MF} {d}, {v4(WB + p*16 + t*4)}, {qreg(slotq*4+nt)}, {c}")
        st = Step(mf)
        st.top.append(W(f"D{step+1}" if nxt else None, [f"T{step}"] + list(extra_lt)))
        if len(dmas) == 1:
            sa, vm = dmas[0]
            st.gaps[0].append(sa[0]); st.gaps[1].append(sa[1])
            for m, x in enumerate(vm): st.gaps[2 + 4 * m].append(x)
        elif len(dmas) == 2:
            for h, (sa, vm) in enumerate(dmas):
                st.gaps[8 * h] += sa
                for m, x in enumerate(vm): st.gaps[8 * h + 1 + 2 * m].append(x)
        else: assert not dmas
        if nxt: st.place(g.tr(step + 1), 0 if len(dmas) != 1 else 1, 12)
        return st

    def gelu(g, acc):
        q = []
        for m in range(2):
            for nt in range(4):
                d = acc + (2 * m * 4 + nt) * 4
                zs = [d + i for i in range(4)] + [d + 16 + i for i in range(4)]
                for p in range(4):
                    a, b = zs[2 * p], zs[2 * p + 1]; x, y = GT + 2 * (p & 1), GT + 1 + 2 * (p & 1)
                    q += [V(f"v_fma_f32 v{x}, v{a}, -v{a}, {sNB}"), V(f"v_fma_f32 v{y}, v{b}, -v{b}, {sNB}"),
                          V(f"v_mul_f32 v{x}, v{x}, v{a}"), V(f"v_mul_f32 v{y}, v{y}, v{b}"),
                          V(f"v_exp_f32 v{x}, v{x}"), V(f"v_exp_f32 v{y}, v{y}"),
                          V(f"v_add_f32 v{x}, 1.0, v{x}"), V(f"v_add_f32 v{y}, 1.0, v{y}"),
                          V(f"v_rcp_f32 v{x}, v{x}"), V(f"v_rcp_f32 v{y}, v{y}"),
                          V(f"v_mul_f32 v{x}, v{x}, v{a}"), V(f"v_mul_f32 v{y}, v{y}, v{b}"),
                          V(f"v_cvt_pk_bf16_f32 v{d+p}, v{x}, v{y}")]
        return q
    def hwrite(g, acc, u, tag):
        return [DS(f"ds_write_b128 v{vHW}, {v4(acc + (2*m*4+nt)*4)} offset:{u*8192 + (m*4+nt)*1024}", tag) for m in range(2) for nt in range(4)]
    def bias_load(g, u):
        return [S(f"s_add_u32 {t0s}, {sBI}, {u*128}")] + \
               [VM(f"buffer_load_dwordx2 {v2(BRAW+2*t)}, v49, {B1}, {t0s} offen offset:{32*t}", f"BI{u}") for t in range(4)]
    def bias_prep(g, u):
        q = [W(f"BI{u}")]
        for i in range(8):
            q += [V(f"v_lshlrev_b32 v{BIAS+2*i}, 16, v{BRAW+i}"), V(f"v_and_b32 v{BIAS+2*i+1}, {sMK}, v{BRAW+i}")]
        for i in range(16): q.append(V(f"v_mul_f32 v{BIAS+i}, {sA}, v{BIAS+i}"))
        return q
    def poll(g, ld, regs_, tag):
        def chk(e):
            ok, slow, loop = g.label("Pk"), g.label("Ps"), g.label("Pl")
            def cmp(A):
                A(f"v_cmp_ne_u32 vcc, {sTAG}, v{regs_[0]}")
                if len(regs_) > 1:
                    A(f"v_cmp_ne_u32 s[80:81], {sTAG}, v{regs_[1]}"); A("s_or_b64 vcc, vcc, s[80:81]")
                else: A("s_cmp_lg_u64 vcc, 0")
            e.wait(tag); cmp(e.A); e.A(f"s_cbranch_scc1 {slow}"); e.A(f"{ok}:")
            o = g.ool.append
            o(f"{slow}:"); o(f"s_movk_i32 {sCNT}, 20000"); o(f"{loop}:")
            o(ld); o("s_waitcnt vmcnt(0)"); cmp(o); o(f"s_cbranch_scc0 {ok}")
            o(f"s_sub_u32 {sCNT}, {sCNT}, 1"); o(f"s_cmp_lg_u32 {sCNT}, 0"); o(f"s_cbranch_scc1 {loop}"); o(f"s_branch {ok}")
        return VM(ld, tag), ('fn', chk)
    def flag(g, soff, wait):
        return [W(wait), VM(f"buffer_store_dword v50, v{vF0}, {WS}, {soff} offen sc1")]
    def stamp(g, i):
        if not g.o['ts']: return []
        return [S(f"s_memtime s[{88+2*(i%6)}:{89+2*(i%6)}]")]

    def prologue(g, e):
        A = e.A
        A("s_cmp_ge_u32 s2, 256"); A("s_cbranch_scc1 L_end")
        for srd, off in ((8, 0), (20, 56), (28, 104), (12, 8), (16, 16), (48, 24), (40, 64), (36, 32), (52, 40), (24, 72), (44, 80), (32, 88)):
            A(f"s_load_dwordx2 s[{srd}:{srd+1}], s[0:1], {off}")
        A(f"v_lshrrev_b32 v1, 6, v0"); A(f"v_and_b32 v{vL}, 63, v0"); A(f"v_readfirstlane_b32 {sW}, v1")
        A(f"s_and_b32 {t0s}, s2, 7"); A(f"s_lshr_b32 {t1s}, s2, 3")
        A(f"s_and_b32 {sT}, {t0s}, 1"); A(f"s_lshl_b32 {sT}, {sT}, 4"); A(f"s_lshr_b32 {t2s}, {t1s}, 1"); A(f"s_add_u32 {sT}, {sT}, {t2s}")
        A(f"s_and_b32 {sJ}, {t0s}, 6"); A(f"s_and_b32 {t2s}, {t1s}, 1"); A(f"s_add_u32 {sJ}, {sJ}, {t2s}")
        for srd, n in ((8, 2359296), (12, 2359296), (16, 2359296), (20, 5308416), (24, 5308416), (28, 0x10000000), (32, 2359296), (36, 2359296), (40, 9216), (44, 1152), (48, 4608)):
            A(f"s_mov_b32 s{srd+2}, {n}"); A(f"s_mov_b32 s{srd+3}, 0x20000")
        A(f"v_lshrrev_b32 v1, 2, v{vL}"); A("v_mul_u32_u24 v1, 1152, v1"); A(f"v_and_b32 v2, 3, v{vL}"); A("v_lshl_add_u32 v1, v2, 4, v1")
        A(f"s_lshl_b32 {t0s}, {sT}, 2"); A(f"s_add_u32 {t0s}, {t0s}, {sW}"); A(f"s_mul_i32 {t0s}, {t0s}, 18432")
        RAW = 48; LO = [120 + i for i in range(8)] + [192 + i for i in range(64)]
        A("s_waitcnt lgkmcnt(0)")
        for m in range(18): e.vmop(f"buffer_load_dwordx4 {v4(RAW+4*m)}, v1, {X}, {t0s} offen offset:{64*m}", f"X{m}")
        A(f"v_lshrrev_b32 v16, 5, v{vL}"); A(f"v_bfe_u32 v17, v{vL}, 3, 2"); A("v_lshl_add_u32 v16, v16, 3, v17")
        A(f"v_bfe_u32 v17, v{vL}, 4, 2"); A("v_lshlrev_b32 v17, 1, v17"); A(f"v_and_b32 v18, 7, v{vL}"); A("v_xor_b32 v17, v17, v18"); A("v_lshlrev_b32 v17, 4, v17")
        A(f"s_movk_i32 {t0s}, 9216"); A(f"v_mad_u32_u24 v{vW1}, v16, {t0s}, v17")
        for m in range(1, 4): A(f"v_add_u32 v{vW1+m}, {(16*(m&1)+4*(m>>1))*9216-1024*m}, v{vW1}")
        A(f"s_mul_i32 {sR}, {sW}, {RGS}"); A(f"s_add_u32 {sR}, {sR}, {RG0}")
        A(f"s_lshl_b32 {t1s}, {sW}, 1"); A(f"s_add_u32 {t1s}, {t1s}, 1"); A(f"s_cmp_eq_u32 {sW}, 0"); A(f"s_cselect_b32 {t1s}, 0, {t1s}")
        A(f"s_mul_i32 {sBI}, {sJ}, 1152"); A(f"s_lshl_b32 {t2s}, {t1s}, 7"); A(f"s_add_u32 {sBI}, {sBI}, {t2s}"); A(f"s_mov_b32 {sW1B}, {sBI}")
        for s in range(g.o['npre']):
            sa, vm = g.dma_w(s); e.items(sa); e.items(vm)
        A(f"v_lshrrev_b32 v16, 3, v{vL}"); A(f"s_movk_i32 {t0s}, 1152"); A(f"v_mad_u32_u24 v{vW2}, v16, {t0s}, v17")
        for m in range(1, 4): A(f"v_add_u32 v{vW2+m}, {8*m*1152-1024*m}, v{vW2}")
        A(f"v_lshrrev_b32 v16, 4, v{vL}"); A("v_lshlrev_b32 v17, 1, v16"); A(f"v_xor_b32 v17, v17, v{vL}"); A(f"v_lshlrev_b32 v{vXH}, 4, v17")
        A(f"v_add_u32 v{vXH2}, 0x10000, v{vXH}"); A(f"s_lshl_b32 {t2s}, {t1s}, 13"); A(f"v_add_u32 v{vHW}, {t2s}, v{vXH}")
        A(f"v_cmp_eq_u32 vcc, 0, v{vL}"); A(f"v_mov_b32 v17, {OOB}"); A("v_mov_b32 v19, 0"); A(f"v_cndmask_b32 v{vF0}, v17, 0, vcc")
        e.vmop(f"buffer_load_dword v190, v19, {WS}, 0 offen sc1", "GEN")
        A("v_lshlrev_b32 v18, 3, v16")
        for t in range(4): e.vmop(f"buffer_load_dwordx2 {v2(BRAW+2*t)}, v18, {B1}, {sBI} offen offset:{32*t}", "BI0")
        A(f"s_and_b32 {t0s}, {sT}, 15"); A(f"s_mul_i32 {t0s}, {t0s}, {36*9216}"); A(f"s_add_u32 {t0s}, {t0s}, {sW1B}")
        A(f"v_min_u32 v16, 35, v{vL}"); A("v_mul_u32_u24 v16, 9216, v16")
        e.vmop(f"buffer_load_dword v191, v16, {W1}, {t0s} offen")
        A(f"v_lshrrev_b32 v17, 3, v{vL}"); A("v_mul_u32_u24 v17, 9216, v17"); A(f"v_and_b32 v18, 7, v{vL}"); A("v_lshl_add_u32 v17, v18, 2, v17")
        A(f"s_mul_i32 {t2s}, {sT}, 73728"); A(f"s_lshl_b32 {t3s}, {sJ}, 7"); A(f"s_add_u32 {t3s}, {t3s}, {t2s}"); A(f"s_lshl_b32 {t4s}, {sW}, 5"); A(f"s_add_u32 {t3s}, {t3s}, {t4s}")
        A(f"v_add_u32 v17, {t3s}, v17"); A("v_subrev_u32 v19, 3456, v17"); A(f"s_movk_i32 {t3s}, 4608")
        for i in range(3): e.vmop(f"buffer_load_dword v{128+i}, v19, {K_}, 0 offen offset:{1152*i}", "KV")
        for i in range(8): e.vmop(f"buffer_load_dword v{131+i}, v17, {K_}, {t3s if i >= 4 else 0} offen offset:{1152*(i&3)}", "KV")
        for i in range(8): e.vmop(f"buffer_load_dword v{139+i}, v17, {V_}, {t3s if i >= 4 else 0} offen offset:{1152*(i&3)}", "KV")
        A("v_lshlrev_b32 v18, 4, v18"); A(f"s_lshl_b32 {t3s}, {sJ}, 9"); A(f"s_lshl_b32 {t4s}, {sW}, 7"); A(f"s_add_u32 {t3s}, {t3s}, {t4s}")
        e.vmop(f"buffer_load_dwordx4 {v4(148)}, v18, {SH}, {t3s} offen", "KV")
        A(f"s_lshl_b32 {t3s}, {sJ}, 4"); A(f"s_lshl_b32 {t4s}, {sW}, 2"); A(f"s_add_u32 {t3s}, {t3s}, {t4s}"); A(f"s_add_u32 {t3s}, {t3s}, 1024")
        A(f"s_add_u32 {t4s}, {t3s}, {t2s}")
        A(f"v_mul_u32_u24 v17, 1152, v{vL}"); A(f"v_add_u32 v17, {t4s}, v17")
        for i in range(3): A(f"v_subrev_u32 v{20+i}, {1152*(3-i)}, v17")
        for i in range(3): e.vmop(f"buffer_load_dword v{184+i}, v{20+i}, {K_}, 0 offen", "KV")
        e.vmop(f"buffer_load_dword v187, v17, {K_}, 0 offen", "KV")
        e.vmop(f"buffer_load_dword v188, v17, {V_}, 0 offen", "KV")
        A(f"s_lshl_b32 {t3s}, {t3s}, 2"); A("v_mov_b32 v19, 0")
        e.vmop(f"buffer_load_dwordx4 {v4(40)}, v19, {SH}, {t3s} offen", "KV")
        e.vmop(f"buffer_load_dword v191, v16, {W1}, {t0s} offen offset:128")
        e.vmop(f"buffer_load_dword v191, v16, {W1}, {t0s} offen offset:256")
        A(f"s_lshl_b32 {sCL}, {sT}, 1"); A(f"s_add_u32 {sCL}, {sCL}, {sW}"); A(f"s_sub_u32 {sCL}, {sCL}, 1"); A(f"s_max_i32 {sCL}, {sCL}, 0")
        A(f"s_lshl_b32 {sC}, {sJ}, 6"); A(f"s_add_u32 {sC}, {sC}, {sCL}")
        A(f"s_lshr_b32 {t0s}, {sT}, 2"); A(f"s_add_u32 {t2s}, {t0s}, 64"); A(f"s_lshl_b32 {t3s}, {sJ}, 3"); A(f"s_add_u32 {t3s}, {t3s}, {t0s}"); A(f"s_add_u32 {t3s}, {t3s}, 512")
        A(f"s_cmp_eq_u32 {sW}, 3"); A(f"s_cselect_b32 {sCL}, {t2s}, {sCL}"); A(f"s_cselect_b32 {sC}, {t3s}, {sC}")
        A(f"s_cselect_b32 {sHC}, {sT}, 0"); A(f"s_and_b32 {sHC}, {sHC}, 3")
        A(f"s_lshl_b32 {t0s}, {sC}, 12"); A(f"s_load_dwordx2 s[54:55], s[36:37], {t0s}")
        A(f"s_lshr_b32 {t2s}, {sC}, 1"); A(f"s_lshl_b32 {t2s}, {t2s}, 2"); A(f"s_load_dword s56, s[52:53], {t2s}")
        A(f"v_and_b32 v16, 31, v{vL}"); A("v_lshlrev_b32 v16, 7, v16")
        e.vmop(f"buffer_load_dword v191, v16, {SSM}, {t0s} offen")
        A(f"s_mov_b32 {sNB}, {f2u(-BETA):#x}"); A(f"s_mov_b32 {sA}, {f2u(AC):#x}"); A(f"s_mov_b32 {sMK}, 0xffff0000"); A(f"s_mov_b32 {sIA}, {f2u(1/AC):#x}")
        A(f"v_lshrrev_b32 v16, 2, v{vL}"); A("v_lshlrev_b32 v16, 7, v16"); A(f"v_and_b32 v17, 3, v{vL}"); A("v_lshl_add_u32 v16, v17, 3, v16"); A(f"v_add_u32 v16, {sR}, v16")
        A(f"v_bfe_u32 v17, v{vL}, 3, 2")
        for t in range(4):
            A(f"v_xor_b32 v18, {t}, v17"); A(f"v_lshl_add_u32 v{vTR+t}, v18, 5, v16")
        A(f"s_mul_i32 {t0s}, {sJ}, 663552")
        A(f"s_add_u32 {t2s}, {sJ}, {sW}"); A(f"s_and_b32 {t2s}, {t2s}, 7"); A(f"s_xor_b32 {t3s}, {t2s}, 4")
        A(f"s_cmp_eq_u32 {sW}, 0"); A(f"s_cselect_b32 {t2s}, 8, {t2s}")
        A(f"s_lshl_b32 {sG1}, {t2s}, 7"); A(f"s_add_u32 {sG1}, {sG1}, {t0s}")
        A(f"s_lshl_b32 {sG2}, {t3s}, 7"); A(f"s_add_u32 {sG2}, {sG2}, {t0s}")
        A(f"s_lshl_b32 {sGO}, {sJ}, 7"); A(f"s_add_u32 {sGO}, {sGO}, {t0s}")
        A(f"s_mul_i32 {t0s}, {sT}, 9")
        for gr, pb in ((t2s, sPB1), (t3s, sPB2)):
            A(f"s_add_u32 {pb}, {t0s}, {gr}"); A(f"s_lshl_b32 {pb}, {pb}, 3"); A(f"s_add_u32 {pb}, {pb}, {sJ}"); A(f"s_lshl_b32 {pb}, {pb}, 13"); A(f"s_add_u32 {pb}, {pb}, {P0}")
        A(f"s_lshl_b32 {t0s}, {sT}, 11"); A(f"s_add_u32 {t0s}, {t0s}, {TA0}")
        A(f"s_sub_u32 {t4s}, {sW}, 1"); A(f"s_cmp_eq_u32 {sW}, 0"); A(f"s_cselect_b32 {t4s}, {sJ}, {t4s}"); A(f"s_lshl_b32 {t4s}, {t4s}, 2")
        A(f"s_lshl_b32 {sFL1}, {t2s}, 7"); A(f"s_add_u32 {sFL1}, {sFL1}, {t0s}"); A(f"s_add_u32 {sFL1}, {sFL1}, {t4s}")
        A(f"s_lshl_b32 {sFL2}, {t3s}, 7"); A(f"s_add_u32 {sFL2}, {sFL2}, {t0s}"); A(f"s_lshl_b32 {t4s}, {sW}, 2"); A(f"s_add_u32 {sFL2}, {sFL2}, {t4s}"); A(f"s_add_u32 {sFL2}, {sFL2}, 16")
        A("s_waitcnt lgkmcnt(0)")
        A(f"s_and_b32 {t0s}, {sC}, 1"); A(f"s_lshl_b32 {t0s}, {t0s}, 4"); A(f"s_lshr_b32 s56, s56, {t0s}"); A("s_lshl_b32 s56, s56, 16")
        A(f"s_lshl_b32 {t0s}, s54, 16"); A(f"v_mov_b32 v16, {t0s}"); A("v_add_f32 v16, s56, v16"); A("v_cvt_pk_bf16_f32 v16, v16, v16")
        A(f"v_mov_b32 v17, s54"); A(f"v_bfi_b32 v16, {sMK}, v17, v16"); A("v_mov_b32 v17, s55")
        A(f"v_bfe_u32 v18, v{vL}, 2, 2"); A("v_sub_u32 v19, 3, v18"); A("v_lshlrev_b32 v19, 4, v19")
        A(f"v_lshlrev_b64 {v2(vFX)}, v19, v[16:17]")
        A(f"v_and_b32 v19, 3, v{vL}"); A("v_cmp_eq_u32 vcc, 3, v19"); A(f"v_mul_u32_u24 v18, {FP}, v18"); A("v_lshl_add_u32 v18, v19, 3, v18")
        A(f"v_cndmask_b32 v{vFX}, 0, v{vFX}, vcc"); A(f"v_cndmask_b32 v{vFX+1}, 0, v{vFX+1}, vcc"); A(f"v_add_u32 v{vFXA}, {sR}, v18")
        A(f"s_mov_b32 {t0s}, 0x3f803f80")
        for i in range(4): A(f"v_mov_b32 v{20+i}, 0")
        for m in range(18):
            e.wait(f"X{m}")
            for i in range(4):
                r = RAW + 4 * m + i; lo = LO[4 * m + i]
                A(f"v_dot2c_f32_bf16 v{20+(i&1)}, {t0s}, v{r}"); A(f"v_dot2c_f32_bf16 v{22+(i&1)}, v{r}, v{r}")
                A(f"v_lshlrev_b32 v{lo}, 16, v{r}"); A(f"v_and_b32 v{r}, {sMK}, v{r}")
        A(f"v_and_b32 v24, 3, v{vL}"); A(f"v_lshrrev_b32 v25, 2, v{vL}")
        A("v_add_f32 v20, v20, v21"); A("v_add_f32 v22, v22, v23")
        A("v_lshlrev_b32 v26, 1, v24"); A("v_xor_b32 v26, v26, v25")
        A("v_add_f32_dpp v20, v20, v20 quad_perm:[1,0,3,2] row_mask:0xf bank_mask:0xf"); A("v_add_f32_dpp v22, v22, v22 quad_perm:[1,0,3,2] row_mask:0xf bank_mask:0xf")
        A("v_lshl_add_u32 v24, v24, 4, v26"); A(f"s_lshl_b32 {t2s}, {sW}, 10")
        A("v_add_f32_dpp v20, v20, v20 quad_perm:[2,3,0,1] row_mask:0xf bank_mask:0xf"); A("v_add_f32_dpp v22, v22, v22 quad_perm:[2,3,0,1] row_mask:0xf bank_mask:0xf")
        A(f"v_lshl_add_u32 v24, v24, 4, {t2s}")
        A(f"v_mul_f32 v20, {f2u(1/576):#x}, v20"); A(f"v_mul_f32 v22, {f2u(1/576):#x}, v22")
        A("v_fma_f32 v22, -v20, v20, v22"); A("v_max_f32 v22, 0, v22")
        A("v_cvt_pk_bf16_f32 v21, v20, v22")
        A(f"v_and_b32 v22, {sMK}, v21"); A("v_lshlrev_b32 v20, 16, v21")
        A(f"v_add_f32 v22, {f2u(1e-5):#x}, v22"); A("v_cvt_pk_bf16_f32 v22, v22, v22"); A(f"v_and_b32 v22, {sMK}, v22")
        A("v_sqrt_f32 v22, v22"); A(f"s_lshl_b32 {t2s}, {sW}, 7"); A("v_cvt_pk_bf16_f32 v22, v22, v22"); A(f"v_and_b32 v22, {sMK}, v22")
        A("v_rcp_f32 v22, v22"); A(f"s_add_u32 {t2s}, {t2s}, {STATS}"); A(f"v_mul_f32 v22, {sA}, v22"); A("v_mul_f32 v23, -v20, v22")
        A(f"v_lshl_add_u32 v25, v25, 3, {t2s}"); A("v_add_u32 v27, 0x8000, v24")
        for m in range(18):
            r = RAW + 4 * m; lo = LO[4 * m]
            for h in (0, 2):
                A(f"v_pk_fma_f32 {v2(lo+h)}, {v2(lo+h)}, v[22:23], v[22:23] op_sel:[0,0,1] op_sel_hi:[1,0,1]")
                A(f"v_pk_fma_f32 {v2(r+h)}, {v2(r+h)}, v[22:23], v[22:23] op_sel:[0,0,1] op_sel_hi:[1,0,1]")
            for i in range(4): A(f"v_cvt_pk_bf16_f32 v{r+i}, v{lo+i}, v{r+i}")
            e.dsop(f"ds_write_b128 v{24 if m < 8 else 27}, {v4(r)} offset:{(m if m < 8 else m - 8)*4096}")
        e.dsop("ds_write_b64 v25, v[22:23]")
        A(f"v_min_u32 v26, 59, v{vL}"); A(f"s_add_u32 {t2s}, {sR}, {GB+4096}"); A(f"v_lshl_add_u32 v26, v26, 3, {t2s}")
        A("v_mov_b32 v28, 0"); A("v_mov_b32 v29, 0")
        e.dsop("ds_write_b64 v26, v[28:29]")
        for s in range(g.o['npre'], 5):
            sa, vm = g.dma_w(s); e.items(sa); e.items(vm)
        e.items(g.bias_prep(0))
        A(f"v_lshlrev_b32 v48, 4, v{vL}"); A(f"v_lshrrev_b32 v49, 4, v{vL}"); A("v_lshlrev_b32 v49, 3, v49")
        e.wait(None, 'ALL'); e.bar()
        e.items(g.fragread(0, 0, "Q0"))
        e.wait("D0"); e.items(g.tr(0)); e.items(g.fragread(1, 1, "Q1"))

    def kv_fill(g):
        q = [W(["KV", "GEN"])]
        q += [V(f"v_add_u32 v50, {TAGC:#x}, v190"), V("v_mov_b32 v51, 0"), V(f"v_readfirstlane_b32 {sTAG}, v50")]
        def ext(d, s, ch): return V(f"v_lshlrev_b32 v{d}, 16, v{s}") if ch == 0 else V(f"v_and_b32 v{d}, {sMK}, v{s}")
        for ch in range(2):
            for i in range(4): q.append(ext(152 + i, 148 + 2 * ch + (i >> 1), i & 1))
            for i in range(11): q.append(ext(156 + i, 128 + i, ch))
            for i in range(8):
                o = 167 + i
                q += [V(f"v_mul_f32 v{o}, v{156+i}, v155"), V(f"v_fmac_f32 v{o}, v{157+i}, v154"), V(f"v_fmac_f32 v{o}, v{158+i}, v153"),
                      V(f"v_fmac_f32 v{o}, v{159+i}, v152"), ext(175, 139 + i, ch), V(f"v_mul_f32 v{o}, v{o}, v175")]
            for d in range(4): q.append(V(f"v_cvt_pk_bf16_f32 v{176+4*ch+d}, v{167+7-2*d}, v{167+6-2*d}"))
        for ch in range(2):
            o = 167 + ch
            for i in range(4): q.append(ext(152 + i, 40 + 2 * ch + (i >> 1), i & 1))
            for i in range(5): q.append(ext(156 + i, 184 + i, ch))
            q += [V(f"v_mul_f32 v{o}, v156, v155"), V(f"v_fmac_f32 v{o}, v157, v154"), V(f"v_fmac_f32 v{o}, v158, v153"),
                  V(f"v_fmac_f32 v{o}, v159, v152"), V(f"v_mul_f32 v{o}, v{o}, v160")]
        q.append(V("v_cvt_pk_bf16_f32 v167, v167, v168"))
        q += [V(f"v_and_b32 v170, 7, v{vL}"), V(f"v_lshrrev_b32 v171, 3, v{vL}"), V("v_sub_u32 v171, 7, v171"), V("v_lshlrev_b32 v171, 4, v171"),
              V("v_lshl_add_u32 v170, v170, 13, v171"), V(f"v_sub_u32 v171, 63, v{vL}"), V("v_lshlrev_b32 v171, 1, v171")]
        q += [S(f"s_mul_i32 {t1s}, {sJ}, {72*4096}"), S(f"s_sub_u32 {t2s}, 31, {sT}"), S(f"s_lshl_b32 {t2s}, {t2s}, 7"), S(f"s_add_u32 {t1s}, {t1s}, {t2s}"),
              S(f"s_add_u32 {t1s}, {t1s}, {KV0}"), S(f"s_lshl_b32 {t2s}, {sW}, 16"), S(f"s_add_u32 {t2s}, {t2s}, {t1s}"),
              VM(f"buffer_store_dwordx4 {v4(176)}, v170, {WS}, {t2s} offen sc1"), S(f"s_add_u32 {t2s}, {t2s}, 4096"),
              VM(f"buffer_store_dwordx4 {v4(180)}, v170, {WS}, {t2s} offen sc1"),
              S(f"s_lshl_b32 {t2s}, {sW}, 13"), S(f"s_add_u32 {t2s}, {t2s}, {t1s}"), S(f"s_add_u32 {t2s}, {t2s}, {64*4096}"),
              VM(f"buffer_store_short v167, v171, {WS}, {t2s} offen sc1"), S(f"s_add_u32 {t2s}, {t2s}, 4096"),
              VM(f"buffer_store_short_d16_hi v167, v171, {WS}, {t2s} offen sc1", "KVS")]
        return q
    def kv_flag(g):
        return [S(f"s_lshl_b32 {t1s}, {sJ}, 10"), S(f"s_lshl_b32 {t2s}, {sT}, 4"), S(f"s_add_u32 {t1s}, {t1s}, {t2s}"),
                S(f"s_lshl_b32 {t2s}, {sW}, 2"), S(f"s_add_u32 {t1s}, {t1s}, {t2s}"), S(f"s_add_u32 {t1s}, {t1s}, {GA0}")] + g.flag(t1s, "KVS")

    def unitA1(g, e):
        steps = []
        for s in range(18):
            st = g.gemm_step(s, s, ACC[0], 'bias' if s == 0 else None, [g.dma_w(s + 5)], extra_lt=[f"Q{s}"])
            if s + 2 < 18: st.place(g.fragread(s + 2, s + 2, f"Q{s+2}"), 12, 16)
            steps.append(st)
        fill = [HOLD(16)] + g.bias_load(1) + g.kv_fill() + [HOLD(16 * 13)] + g.kv_flag() + g.bias_prep(1)
        run_steps(e, steps, fill)

    def unitA2(g, e, role):
        steps = []; fill = [HOLD(2)]
        for s in range(18, 36):
            if role == 0: d = [g.dma_w(s + 5)]
            elif s + 5 < 36: d = [g.dma_w(s + 5)]
            elif role == 1 and s < 35: d = [g.dma_f(s - 30)]
            else: d = []
            st = g.gemm_step(s, s - 18, ACC[1], 'bias' if s == 18 else None, d, nxt=(role == 0 or s < 35))
            if s == 19: st.top.append(('bar',))
            steps.append(st)
        gl = g.gelu(ACC[0])
        if role == 0:
            fill += gl[:26] + [HOLD(16)] + g.bias_load(2) + gl[26:] + g.bias_prep(2) + [('grp', g.hwrite(ACC[0], 0, "HW0"))]
        elif role == 1:
            pi, pc = g.poll(f"buffer_load_dwordx2 v[52:53], v51, {WS}, {t3s} offen sc1", [52, 53], "PKV")
            pre = [V(f"v_lshlrev_b32 v51, 3, v{vL}"), S(f"s_lshl_b32 {t3s}, {sJ}, 10"), S(f"s_add_u32 {t3s}, {t3s}, {GA0}"), S(f"s_lshl_b32 {t4s}, {sC}, 12")]
            steps[6].place([pi], 12, 16)
            gld = [S(f"s_mul_i32 {t1s}, {sJ}, 72"), S(f"s_add_u32 {t1s}, {t1s}, {sCL}"), S(f"s_lshl_b32 {t1s}, {t1s}, 12"), S(f"s_add_u32 {t1s}, {t1s}, {KV0}")]
            steps[10].gaps[12] += gld + [pc]
            steps[11].place([VM(f"buffer_load_dwordx4 {a4(4*p)}, v48, {WS}, {t1s} offen offset:{1024*p} sc1", "GL") for p in range(4)], 12, 16)
            adr = [V(f"v_and_b32 v55, 3, v{vL}"), V(f"v_mul_u32_u24 v55, {FP}, v55"), V(f"v_bfe_u32 v56, v{vL}, 2, 2"), V("v_lshl_add_u32 v55, v56, 3, v55"),
                   V("v_lshl_add_u32 v55, v49, 1, v55"), V(f"v_add_u32 v56, {sR}, v55"),
                   V(f"v_and_b32 v55, 15, v{vL}"), V("v_lshlrev_b32 v55, 5, v55"), V("v_lshlrev_b32 v57, 1, v49"), V("v_sub_u32 v55, v57, v55"),
                   V(f"v_add_u32 v55, {GB+480}, v55"), V(f"v_add_u32 v57, {sR}, v55"),
                   V(f"v_add_u32 v54, {GB}, v48"), V(f"v_add_u32 v54, {sR}, v54")]
            fill += pre + adr + gl
            last = steps[-1]
            last.gaps[8] += [W('ALL')] + [DS(f"ds_write_b128 v54, {a4(4*p)} offset:{1024*p}") for p in range(4)] + [DS(f"ds_write_b64 v{vFXA}, {v2(vFX)}")]
            last.place(g.conv_reads(0), 9, 16)
        else:
            fill += gl
        run_steps(e, steps, fill)

    def conv_reads(g, b):
        p = b & 1; F = 128 + p * 64; Gr = F + 32; it = []
        def fr(u):
            t = 8 * u + b
            return [DS(f"ds_read_b64 a[{F+4*u}:{F+4*u+1}], v56 offset:{64*t}", f"C{b}"), DS(f"ds_read_b64 a[{F+4*u+2}:{F+4*u+3}], v56 offset:{64*t+8}", f"C{b}")]
        it += fr(0)
        for v in range(8): it.append(DS(f"ds_read_b128 {a4(Gr+4*v)}, v57 offset:{64*(b-8*v+56)}", f"C{b}"))
        for u in range(1, 8): it += fr(u)
        return it
    def cacc(g, c): return ACC[0] + 16 + (c >> 2) * 32 + (c & 3) * 4
    def unitConv(g, e):
        steps = []
        for b in range(8):
            p = b & 1; F = 128 + p * 64; Gr = F + 32; mf = []
            for u in range(8):
                for v in range(8 - u):
                    d = v4(g.cacc(u + v)); c = "0" if (b == 0 and u == 0) else d
                    mf.append(f"{MF} {d}, {a4(Gr+4*v)}, {a4(F+4*u)}, {c}")
            st = Step(mf); st.top.append(W(None, f"C{b}"))
            if b < 7: st.place(g.conv_reads(b + 1), 0, 28)
            if b == 0: st.place(g.hwrite(ACC[0], 0, "HW0"), 28, 36)
            if b == 2: st.top.append(('bar',))
            if 2 <= b < 6:
                st.place(g.fragread(2 * (b - 2), KSB[2 * (b - 2)], f"H{2*(b-2)}") + g.fragread(2 * (b - 2) + 1, KSB[2 * (b - 2) + 1], f"H{2*(b-2)+1}"), 28, 36)
            steps.append(st)
        fill = [HOLD(2)] + g.gelu(ACC[1])
        run_steps(e, steps[:7], fill)
        st = steps[7]
        st.place(g.hwrite(ACC[1], 1, "HW1"), 0, 8)
        for i in range(5):
            sa, vm = g.dma_w(54 + i)
            st.gaps[8 + 5 * i] += sa
            for m in range(4): st.gaps[9 + 5 * i + m].append(vm[m])
        run_steps(e, [st], [])
        e.wait("D54"); e.items(g.tr(54))
    def unitIdle(g, e):
        e.A("s_nop 7")
        e.items(g.hwrite(ACC[0], 0, "HW0"))
        e.A(f"s_and_b32 {t0s}, {sT}, 15"); e.A(f"s_lshr_b32 {t1s}, {t0s}, 2"); e.A(f"s_sub_u32 {t0s}, {t0s}, {t1s}"); e.A(f"s_sub_u32 {t0s}, {t0s}, 1")
        e.A(f"s_mul_i32 {t0s}, {t0s}, 55296"); e.A(f"s_mul_i32 {t1s}, {sJ}, 663552"); e.A(f"s_add_u32 {t0s}, {t0s}, {t1s}")
        e.A(f"v_lshlrev_b32 v52, 7, v{vL}")
        for i in range(7):
            e.vmop(f"buffer_load_dword v53, v52, {W2}, {t0s} offen"); e.A(f"s_add_u32 {t0s}, {t0s}, 8192")
        e.wait(None, "HW0"); e.bar()
        e.items(g.gelu(ACC[1])); e.items(g.hwrite(ACC[1], 1, "HW1"))
        for b in range(8): e.items(g.fragread(b, KSB[b], f"H{b}"))
        for i in range(5):
            sa, vm = g.dma_w(54 + i); e.items(sa); e.items(vm)
        e.wait("D54"); e.items(g.tr(54))
    def unitA3(g, e):
        steps = []
        for s in range(36, 54):
            st = g.gemm_step(s, s - 36, ACC[0], 'bias' if s == 36 else None, [g.dma_w(s + 5)])
            if s == 36: st.top.insert(0, W(None, "HW0"))
            if s == 36 + 5: st.top.append(('bar',))
            b = s - 36 - 9
            if 0 <= b < 8: st.place(g.fragread(b, KSB[b], f"H{b}"), 12, 16)
            steps.append(st)
        fill = [HOLD(2)] + g.gelu(ACC[1]) + [('grp', g.hwrite(ACC[1], 1, "HW1"))]
        run_steps(e, steps, fill)

    def unitB1(g, e, role):
        steps = []
        for b in range(18):
            s = 54 + b
            st = g.gemm_step(s, b, ACC[1], 'zero' if b == 0 else None, [g.dma_w(s + 5)], extra_lt=[f"H{b}"] + (["HW1"] if b == 0 else []))
            if b == 4: st.top.append(('bar',))
            if 6 <= b < 14: st.place(g.fragread(b + 2, KSB[b + 2], f"H{b+2}"), 12, 16)
            if b == 15:
                if role == 0: st.top.append(W(None, "HW2"))
                st.top.append(('bar',))
                st.place(g.fragread(16, KSB[16], "H16"), 0, 8); st.place(g.fragread(17, KSB[17], "H17"), 12, 16)
            steps.append(st)
        if role == 0:
            fill = [HOLD(2)] + g.gelu(ACC[0]) + [('grp', g.hwrite(ACC[0], 2, "HW2"))]
            run_steps(e, steps[:15], fill, b_empty=16, b_full=12); run_steps(e, steps[15:], [])
        elif role == 1:
            fill = [HOLD(2), V(f"v_lshlrev_b32 v52, 3, v{vL}"),
                    S(f"s_mul_i32 {t1s}, {sJ}, 72"), S(f"s_add_u32 {t1s}, {t1s}, {sCL}"), S(f"s_lshl_b32 {t1s}, {t1s}, 12"), S(f"s_add_u32 {t1s}, {t1s}, {Y0}")]
            for c in range(8):
                d = g.cacc(c)
                fill += [V(f"v_cvt_pk_bf16_f32 v{d}, v{d}, v{d+1}"), V(f"v_cvt_pk_bf16_f32 v{d+1}, v{d+2}, v{d+3}"),
                         VM(f"buffer_store_dwordx2 {v2(d)}, v52, {WS}, {t1s} offen offset:{512*c} sc1", "YS")]
            fill += [HOLD(16 * 7), S(f"s_lshl_b32 {t1s}, {sJ}, 10"), S(f"s_lshl_b32 {t2s}, {sCL}, 2"), S(f"s_add_u32 {t1s}, {t1s}, {t2s}"), S(f"s_add_u32 {t1s}, {t1s}, {GA0+512}")] + g.flag(t1s, "YS")
            run_steps(e, steps, fill)
        else:
            run_steps(e, steps, [])

    def pstore(g, acc, base, tag):
        q = [S(f"s_add_u32 {t0s}, {base}, 4096")]
        for ct in range(4):
            for np_ in range(2):
                d = acc + (ct * 4 + 2 * np_) * 4; k = ct * 2 + np_
                for i in range(4): q.append(V(f"v_cvt_pk_bf16_f32 v{d+i}, v{d+2*i}, v{d+2*i+1}"))
                q.append(VM(f"buffer_store_dwordx4 {v4(d)}, v48, {WS}, {base if k < 4 else t0s} offen offset:{(k&3)*1024} sc1", tag))
        return q
    def padd(g, raw, dst, tmp):
        q = []
        for i in range(8):
            q += [V(f"v_lshlrev_b32 v{tmp}, 16, v{raw+i}"), V(f"v_and_b32 v{tmp+1}, {sMK}, v{raw+i}"),
                  V(f"v_add_f32 v{dst+2*i}, v{dst+2*i}, v{tmp}"), V(f"v_add_f32 v{dst+2*i+1}, v{dst+2*i+1}, v{tmp+1}")]
        return q
    def pload(g, rel, raw, tag):
        return [S(f"s_sub_u32 {t1s}, {sJ}, {rel}"), S(f"s_and_b32 {t1s}, {t1s}, 7"), S(f"s_lshl_b32 {t1s}, {t1s}, 13"), S(f"s_add_u32 {t1s}, {t1s}, {sPB1}"),
                VM(f"buffer_load_dwordx4 {v4(raw)}, v48, {WS}, {t1s} offen sc1", tag), VM(f"buffer_load_dwordx4 {v4(raw+4)}, v48, {WS}, {t1s} offen offset:1024 sc1", tag)]

    def own_tr(g, s):
        p = s & 1; it = []
        for kk in range(4):
            b = 4 * s + kk
            if b >= 18: break
            r = WB + p * 16 + kk * 4; a, off = (2, b * 4096) if b < 8 else (3, (b - 8) * 4096)
            it += [DS(f"ds_read_b64_tr_b16 {v2(r)}, v{a} offset:{off}", f"O{s}"), DS(f"ds_read_b64_tr_b16 {v2(r+2)}, v{a} offset:{off+2048}", f"O{s}")]
        return it
    def unitB2(g, e):
        OWN = BIAS
        steps = []
        nown = 0
        for b in range(18):
            s = 72 + b
            st = g.gemm_step(s, b, ACC[0], 'zero' if b == 0 else None, [g.dma_w(s + 5)] if b + 5 < 18 else [], nxt=b < 17)
            if b == 0: st.top.append(('bar',))
            if 1 <= b <= 14:
                n = 1 if b < 13 else 3
                gp = [15] if b < 13 else [3, 8, 13]
                for k in range(n):
                    st.gaps[gp[k]] += [S(f"s_add_u32 m0, {t4s}, {nown*4096}"), S(f"s_add_u32 {sSO}, {sGO}, {KSB[nown]*32*1152}"),
                                       VM(f"buffer_load_dwordx4 v0, {W2}, {sSO} offen lds", "DO")]
                    nown += 1
            if b == 17:
                st.top += [W("DO"), ('bar',)]
                st.place(g.own_tr(0), 0, 12)
            steps.append(st)
        assert nown == 18
        e.A(f"s_mul_i32 {t4s}, {sW}, 9216"); e.A(f"v_add_u32 v0, {t4s}, v{vW2}"); e.A(f"s_lshl_b32 {t4s}, {sW}, 10")
        f = [HOLD(2)] + g.pstore(ACC[1], sPB1, "PS1")
        f += [V(f"v_bfe_u32 v2, v{vL}, 3, 2"), V(f"v_xor_b32 v2, {sW}, v2"), V("v_lshlrev_b32 v2, 5, v2"), V(f"v_lshrrev_b32 v3, 2, v{vL}"), V("v_lshl_add_u32 v2, v3, 7, v2"),
              V(f"v_and_b32 v3, 3, v{vL}"), V("v_lshl_add_u32 v2, v3, 3, v2"), V("v_add_u32 v3, 0x8000, v2")]
        XR, YR, ST, B2R, B2A, PE = 128, 136, 144, 152, 154, 160
        f += [V(f"v_and_b32 v51, 15, v{vL}"), V("v_mul_u32_u24 v1, 1152, v51"), V("v_add_u32 v1, v1, v49"),
              V("v_lshlrev_b32 v51, 3, v51"),
              V(f"v_add_u32 v52, {STATS}, v51"),
              S(f"s_lshl_b32 {t2s}, {sJ}, 7"), S(f"s_lshl_b32 {t3s}, {sW}, 5"), S(f"s_add_u32 {t2s}, {t2s}, {t3s}"),
              S(f"s_mul_i32 {sXO}, {sT}, 73728"), S(f"s_add_u32 {sXO}, {sXO}, {t2s}"),
              VM(f"buffer_load_dwordx2 {v2(B2R)}, v49, {B2}, {t2s} offen", "XL")]
        for nt in range(4):
            f += [S(f"s_add_u32 {t1s}, {sXO}, {nt*18432}"), VM(f"buffer_load_dwordx2 {v2(XR+2*nt)}, v1, {X}, {t1s} offen", "XL"),
                  DS(f"ds_read_b64 {v2(ST+2*nt)}, v52 offset:{128*nt}", "STL")]
        G8X, G8Y, G8S, G8B, G8P, G8A = 32, 34, 38, 40, 56, 44
        f += [V("v_and_b32 v54, 8, v49"), V("v_sub_u32 v53, v1, v49"), V("v_add_u32 v53, v53, v54"),
              S(f"s_lshl_b32 {t2s}, {sJ}, 4"), S(f"s_add_u32 {t2s}, {t2s}, 1024"),
              VM(f"buffer_load_dwordx2 {v2(G8B)}, v54, {B2}, {t2s} offen", "XL"),
              S(f"s_lshl_b32 {t3s}, {sT}, 2"), S(f"s_add_u32 {t3s}, {t3s}, {sW}"), S(f"s_mul_i32 {t3s}, {t3s}, 18432"), S(f"s_add_u32 s75, {t3s}, {t2s}"),
              VM(f"buffer_load_dwordx2 {v2(G8X)}, v53, {X}, s75 offen", "XL"),
              S(f"s_lshl_b32 {t1s}, {sW}, 7"), V(f"v_add_u32 v52, {t1s}, v52"), DS(f"ds_read_b64 {v2(G8S)}, v52", "STL")]
        f += [S(f"s_lshl_b32 {t1s}, {sJ}, 10"), S(f"s_add_u32 {t1s}, {t1s}, {GA0+512}"),
              S(f"s_lshl_b32 {t2s}, {sT}, 11"), S(f"s_add_u32 {t2s}, {t2s}, {TA0}"), S(f"s_lshl_b32 {t3s}, {sJ}, 7"), S(f"s_add_u32 s76, {t3s}, {t2s}"),
              S(f"s_add_u32 {t2s}, {t2s}, {1024-36*8}"),
              V(f"v_lshlrev_b32 v42, 3, v{vL}"), V(f"v_add_u32 v55, {t1s}, v42"), V(f"v_add_u32 v42, {t2s}, v42"),
              V(f"v_cmp_gt_u32 vcc, 36, v{vL}"), V(f"v_min_u32 v43, 41, v{vL}"), V("v_lshlrev_b32 v43, 2, v43"), V("v_cndmask_b32 v55, v42, v55, vcc"),
              V(f"v_cmp_gt_u32 vcc, 40, v{vL}"), V("v_subrev_u32 v43, 160, v43"), V("v_add_u32 v43, s76, v43"), V("v_cndmask_b32 v55, v43, v55, vcc")]
        f += [HOLD(16 * 5)] + g.flag(sFL1, "PS1")
        f += [W("XL", "STL")]
        f += [V(f"v_lshlrev_b32 v{B2A}, 16, v{B2R}"), V(f"v_and_b32 v{B2A+1}, {sMK}, v{B2R}"), V(f"v_lshlrev_b32 v{B2A+2}, 16, v{B2R+1}"), V(f"v_and_b32 v{B2A+3}, {sMK}, v{B2R+1}")]
        for i in range(4): f.append(V(f"v_mul_f32 v{B2A+i}, {sA}, v{B2A+i}"))
        XN = 168
        for nt in range(4):
            for r in range(4):
                src = XR + 2 * nt + (r >> 1); o = 4 * nt + r
                f.append(V(f"v_lshlrev_b32 v{XN+o}, 16, v{src}") if r & 1 == 0 else V(f"v_and_b32 v{XN+o}, {sMK}, v{src}"))
                f.append(V(f"v_fma_f32 v{OWN+o}, v{XN+o}, {sA}, v{B2A+r}"))
                f.append(V(f"v_fma_f32 v{XN+o}, v{XN+o}, v{ST+2*nt}, v{ST+2*nt+1}"))
        pi, pc = g.poll(f"buffer_load_dwordx2 v[42:43], v55, {WS}, 0 offen sc1", [42, 43], "PE")
        f += [HOLD(16 * 8), pi]
        f += [V("v_lshl_add_u32 v52, v49, 11, v51"), V("v_lshl_add_u32 v54, v54, 11, v51"),
              V(f"v_lshrrev_b32 v51, 5, v{vL}"), V("v_lshlrev_b32 v51, 15, v51"), V("v_and_b32 v152, 0x1f0, v48"), V("v_add_u32 v51, v51, v152"),
              S(f"s_mul_i32 {sPB1}, {sT}, 9"), S(f"s_add_u32 s77, {sPB1}, 8"), S(f"s_add_u32 {sPB1}, {sPB1}, {sJ}"), S(f"s_lshl_b32 {sPB1}, {sPB1}, 16"),
              S(f"s_lshl_b32 {t1s}, {sW}, 11"), S(f"s_add_u32 {sPB1}, {sPB1}, {t1s}"), S(f"s_add_u32 {sPB1}, {sPB1}, {P0}"),
              S("s_lshl_b32 s77, s77, 16"), S(f"s_add_u32 s77, s77, {P0}"),
              S(f"s_lshr_b32 {t1s}, {sJ}, 1"), S(f"s_lshl_b32 {t1s}, {t1s}, 11"), S(f"s_add_u32 s77, s77, {t1s}"),
              S(f"s_lshr_b32 {t1s}, {sW}, 1"), S(f"s_lshl_b32 {t1s}, {t1s}, 10"), S(f"s_add_u32 s77, s77, {t1s}"),
              S(f"s_and_b32 {t1s}, {sJ}, 1"), S(f"s_lshl_b32 {t1s}, {t1s}, 9"), S(f"s_add_u32 s77, s77, {t1s}"),
              S(f"s_and_b32 {t1s}, {sW}, 1"), S(f"s_lshl_b32 s79, {t1s}, 4"), S("s_sub_u32 s79, 16, s79"), S(f"s_lshl_b32 {t1s}, {t1s}, 3"), S(f"s_add_u32 s77, s77, {t1s}"),
              S(f"s_mul_i32 s78, {sJ}, {72*4096}"), S(f"s_lshl_b32 {t1s}, {sT}, 7"), S(f"s_add_u32 s78, s78, {t1s}"), S(f"s_add_u32 s78, s78, {Y0}")]
        f += [HOLD(16 * 11), pc]
        f += [S(f"s_lshl_b32 {t2s}, {sW}, 16"), S(f"s_add_u32 {t2s}, {t2s}, s78")]
        for r in range(4): f += [S(f"s_add_u32 {t1s}, {t2s}, {4096*r}"), VM(f"buffer_load_dwordx2 {v2(YR+2*r)}, v52, {WS}, {t1s} offen sc1", "YL")]
        for k, raw in enumerate((160, 184, 128)): f += g.pload(k + 1, raw, f"PL{k}")
        f += [S(f"s_lshr_b32 {t2s}, {sW}, 1"), S(f"s_lshl_b32 {t2s}, {t2s}, 2"), S(f"s_add_u32 {t2s}, {t2s}, s78")]
        for r in range(4): f += [S(f"s_add_u32 {t1s}, {t2s}, {4096*(64+r)}"), VM(f"buffer_load_dword v{G8Y+r}, v54, {WS}, {t1s} offen sc1", "G8L")]
        for i in range(4): f += [S(f"s_add_u32 {t1s}, s77, {8192*i}"), VM(f"buffer_load_dwordx2 {v2(G8P+2*i)}, v51, {WS}, {t1s} offen sc1", "G8L")]
        f += [HOLD(16 * 15), W("YL")]
        for r in range(4):
            for nt in range(4):
                src = YR + 2 * r + (nt >> 1); o = 4 * nt + r
                f.append(V(f"v_lshlrev_b32 v152, 16, v{src}") if nt & 1 == 0 else V(f"v_and_b32 v152, {sMK}, v{src}"))
                f.append(V(f"v_fmac_f32 v{OWN+o}, v{XN+o}, v152"))
        for k, raw in enumerate((160, 184, 128)): f += [W(f"PL{k}")] + g.padd(raw, OWN, 152)
        run_steps(e, steps, f)
        e.A("s_nop 1")
        steps = []
        for s in range(5):
            p = s & 1; mf = []
            for kk in range(4):
                b = 4 * s + kk
                if b >= 18: break
                for nt in range(4): mf.append(f"{MF} {v4(OWN+4*nt)}, {v4(WB+p*16+kk*4)}, {qreg(b*4+nt)}, {v4(OWN+4*nt)}")
            st = Step(mf); st.top.append(W(None, f"O{s}")); st.force = True
            if s < 4: st.place(g.own_tr(s + 1), 0, 12)
            steps.append(st)
        f = g.pstore(ACC[0], sPB2, "PS2")
        f += [W("G8L")]
        for r in range(4):
            for i in range(4):
                src = G8P + 2 * i + (r >> 1); d = G8A + r if i == 0 else 152
                f.append(V(f"v_lshlrev_b32 v{d}, 16, v{src}") if r & 1 == 0 else V(f"v_and_b32 v{d}, {sMK}, v{src}"))
                if i: f.append(V(f"v_add_f32 v{G8A+r}, v{G8A+r}, v152"))
        for r in range(4): f.append(V(f"v_mov_b32 v{G8P+r}, v{G8A+r}"))
        f += [V(f"v_cmp_gt_u32 vcc, 32, v{vL}"), V(f"v_mov_b32 v152, {OOB}")]
        for r in range(4): f.append(V(f"v_permlane32_swap_b32 v{G8A+r}, v{G8P+r}"))
        f.append(V("v_cndmask_b32 v53, v152, v53, vcc"))
        for r in range(4):
            x, b, y = 152, 153, G8Y + r
            f += [V(f"v_add_f32 v{G8A+r}, v{G8A+r}, v{G8P+r}"),
                  V(f"v_lshlrev_b32 v{x}, 16, v{G8X+(r>>1)}") if r & 1 == 0 else V(f"v_and_b32 v{x}, {sMK}, v{G8X+(r>>1)}"),
                  V(f"v_lshlrev_b32 v{b}, 16, v{G8B+(r>>1)}") if r & 1 == 0 else V(f"v_and_b32 v{b}, {sMK}, v{G8B+(r>>1)}"),
                  V(f"v_lshlrev_b32 v{y}, s79, v{y}"), V(f"v_and_b32 v{y}, {sMK}, v{y}"),
                  V(f"v_add_f32 v{b}, v{b}, v{x}"), V(f"v_fma_f32 v{x}, v{x}, v{G8S}, v{G8S+1}"),
                  V(f"v_fmac_f32 v{G8A+r}, v{x}, v{y}"), V(f"v_fma_f32 v{G8A+r}, v{G8A+r}, {sIA}, v{b}")]
        f += [V(f"v_cvt_pk_bf16_f32 v{G8A}, v{G8A}, v{G8A+1}"), V(f"v_cvt_pk_bf16_f32 v{G8A+1}, v{G8A+2}, v{G8A+3}"),
              V(f"v_and_b32 v55, 3, v{vL}"), V("v_lshlrev_b32 v55, 2, v55")]
        f += [HOLD(56)] + g.flag(sFL2, "PS2")
        f += [VM(f"buffer_store_dwordx2 {v2(G8A)}, v53, {OUT}, s75 offen")]
        run_steps(e, steps, f)
        pi, pc = g.poll(f"buffer_load_dword v42, v55, {WS}, s76 offen offset:16 sc1", [42], "PL")
        e.item(pi); e.item(pc)
        for k in range(4): e.items(g.pload(4 + k, 128 + 8 * k, f"LL{k}"))
        for k in range(4): e.wait(f"LL{k}"); e.items(g.padd(128 + 8 * k, OWN, 160))
        for nt in range(4):
            o = OWN + 4 * nt
            for r in range(4): e.A(f"v_mul_f32 v{o+r}, {sIA}, v{o+r}")
            e.A(f"v_cvt_pk_bf16_f32 v{o}, v{o}, v{o+1}"); e.A(f"v_cvt_pk_bf16_f32 v{o+1}, v{o+2}, v{o+3}")
            e.A(f"s_add_u32 {t1s}, {sXO}, {nt*18432}")
            e.vmop(f"buffer_store_dwordx2 {v2(o)}, v1, {OUT}, {t1s} offen")
        e.A(f"s_or_b32 {t1s}, {sT}, {sJ}"); e.A(f"s_or_b32 {t1s}, {t1s}, {sW}"); e.A(f"s_cmp_lg_u32 {t1s}, 0"); e.A("s_cbranch_scc1 L_end")
        e.vmop(f"buffer_store_dword v50, v{vF0}, {WS}, 0 offen sc1")

    def build(g):
        e0 = Em(); g.prologue(e0); g.unitA1(e0)
        e0.A(f"s_cmp_eq_u32 {sW}, 0"); e0.A("s_cbranch_scc1 L_r0")
        e0.A(f"s_cmp_lg_u32 {sHC}, 0"); e0.A("s_cbranch_scc1 L_r2")
        r = [e0.fork() for _ in range(3)]
        r[0].A("L_r0:"); g.unitA2(r[0], 0); g.unitA3(r[0]); g.unitB1(r[0], 0)
        g.unitA2(r[1], 1); g.unitConv(r[1]); g.unitB1(r[1], 1); r[1].A("s_branch L_m")
        r[2].A("L_r2:"); g.unitA2(r[2], 2); g.unitIdle(r[2]); g.unitB1(r[2], 2); r[2].A("s_branch L_m")
        m = Em.merge(r); m.A("L_m:"); g.unitB2(m)
        errs = []
        for i in range(3): errs += check(e0.L + r[i].L + m.L, f"role{i}")
        errs = sorted(set(errs))
        for x in errs: print("HAZARD", x, file=sys.stderr)
        body = e0.L + r[1].L + r[2].L + r[0].L + m.L + ["L_end:", "s_endpgm"] + g.ool
        hdr = ["; @launch grid=(256,1,1) block=(256,1,1) lds=163840", '.amdgcn_target "amdgcn-amd-amdhsa--gfx950"', ".text", f".globl {NAME}", ".p2align 8", f".type {NAME},@function", f"{NAME}:"]
        ftr = ['.section .rodata,"a"', ".p2align 6", f".amdhsa_kernel {NAME}", "  .amdhsa_next_free_vgpr 512", "  .amdhsa_next_free_sgpr 102", "  .amdhsa_accum_offset 256",
               "  .amdhsa_group_segment_fixed_size 0", "  .amdhsa_kernarg_size 112", "  .amdhsa_user_sgpr_count 2", "  .amdhsa_user_sgpr_kernarg_segment_ptr 1",
               "  .amdhsa_system_sgpr_workgroup_id_x 1", ".end_amdhsa_kernel"]
        return "\n".join(hdr + body + ftr) + "\n", errs

if __name__ == "__main__":
    out = sys.argv[1]
    opts = eval("dict(" + (sys.argv[2] if len(sys.argv) > 2 else "") + ")")
    txt, errs = G(**opts).build()
    open(out, "w").write(txt)
    print(len(txt), "bytes", txt.count("\n"), "lines", len(errs), "hazards")
```

```python
import sys, struct, math
from fw import *
NAME = "parallel_sum__ssm_conv_h3__dense_activation_gelu__prompt_kernel"
def f2u(x): return struct.unpack("<I", struct.pack("<f", x))[0]
KC = 2 * math.sqrt(2 / math.pi) * math.log2(math.e)
AC = (KC * 0.044715) ** (1 / 3); BETA = KC / AC
GA0, TA0, KV0, Y0, P0 = 1024, 16384, 0x100000, 0x400000, 0x800000
TAGC = 0x9E3779B9
OOB = 0x80000000
RG0, RGS = 73728, 22528
SL0, FP, GB, STATS = 256, 4160, 16640, 73728 + 21248
sW, sT, sJ, sR, sTAG = "s3", "s4", "s5", "s6", "s7"
X, K_, V_, W1, W2, WS, OUT, SSM, B1, B2, SH = [f"s[{a}:{a+3}]" for a in range(8, 52, 4)]
sSO, sW1B, sG1, sG2, sGO = "s57", "s58", "s59", "s60", "s61"
sNB, sA, sMK, sIA = "s62", "s63", "s64", "s65"
sC, sCL, sHC = "s66", "s67", "s68"
sBI = "s69"
sCNT = "s82"
sPB1, sPB2, sFL1, sFL2, sXO = "s83", "s84", "s85", "s86", "s87"
t0s, t1s, t2s, t3s, t4s = "s70", "s71", "s72", "s73", "s74"
vW1, vW2, vTR, vXH, vXH2, vL, vF0 = 0, 4, 8, 12, 13, 14, 15
BIAS, BRAW, GT = 16, 32, 40
vFX, vFXA, vHW = 44, 46, 47
ACC = (64, 128); WB = 192
def qreg(i):
    r = i * 4
    return f"a[{r}:{r+3}]" if r < 256 else f"v[{224 + r - 256}:{224 + r - 256 + 3}]"
def v4(r): return f"v[{r}:{r+3}]"
def v2(r): return f"v[{r}:{r+1}]"
def a4(r): return f"a[{r}:{r+3}]"
BORD = [0, 3, 5, 7, 1, 4, 6, 8, 2]
KSB = [2 * s + h for s in BORD for h in (0, 1)]
MF = "v_mfma_f32_16x16x32_bf16"

class G:
    def __init__(g, **o):
        g.o = dict(cpf=0, npre=5, dbg=False, stop=None, ts=False); g.o.update(o)
        g.ool = []; g.lab = 0
    def label(g, p="L"):
        g.lab += 1; return f"{p}{g.lab}"

    def slot(g, step): return SL0 + ((step + 4) % 5) * 4096
    def dma_w(g, step):
        if step < 54:
            u, ks = divmod(step, 18); srd, vb, sb, off = W1, vW1, sW1B, u * 128 + ks * 32 * 9216
        else:
            u, b = divmod(step - 54, 18); srd, vb, sb, off = W2, vW2, (sG1, sG2)[u], KSB[b] * 32 * 1152
        return ([S(f"s_add_u32 m0, {sR}, {g.slot(step)}"), S(f"s_add_u32 {sSO}, {sb}, {off}")],
                [VM(f"buffer_load_dwordx4 v{vb+m}, {srd}, {sSO} offen offset:{1024*m} lds", f"D{step}") for m in range(4)])
    def dma_f(g, m):
        return ([S(f"s_add_u32 m0, {sR}, {FP*(m-1)+32}"), S(f"s_add_u32 {sSO}, {t4s}, {2*m}")],
                [VM(f"buffer_load_dwordx4 v48, {SSM}, {sSO} offen offset:{1024*p} lds", f"F{m}") for p in range(4)])
    def tr(g, step):
        p = step & 1; it = []
        for t in range(4):
            r = WB + p * 16 + t * 4
            it.append(DS(f"ds_read_b64_tr_b16 {v2(r)}, v{vTR+t} offset:{g.slot(step)}", f"T{step}"))
            it.append(DS(f"ds_read_b64_tr_b16 {v2(r+2)}, v{vTR+t} offset:{g.slot(step)+2048}", f"T{step}"))
        return it
    def fragread(g, slot, ks, tag):
        it = []
        for nt in range(4):
            f = ks * 4 + nt
            a, off = (vXH, f * 1024) if f < 64 else (vXH2, (f - 64) * 1024)
            it.append(DS(f"ds_read_b128 {qreg(slot*4+nt)}, v{a} offset:{off}", tag))
        return it
    def gemm_step(g, step, slotq, acc, first, dmas, nxt=True, extra_lt=()):
        p = step & 1; mf = []
        for t in range(4):
            for nt in range(4):
                d = v4(acc + (t * 4 + nt) * 4)
                c = d if not first else (v4(BIAS + 4 * t) if first == 'bias' else "0")
                mf.append(f"{MF} {d}, {v4(WB + p*16 + t*4)}, {qreg(slotq*4+nt)}, {c}")
        st = Step(mf)
        st.top.append(g.SS(f"s{step}"))
        st.top.append(W(f"D{step+1}" if nxt else None, [f"T{step}"] + list(extra_lt)))
        if len(dmas) == 1:
            sa, vm = dmas[0]
            st.gaps[0].append(sa[0]); st.gaps[1].append(sa[1])
            for m, x in enumerate(vm): st.gaps[2 + 4 * m].append(x)
        elif len(dmas) == 2:
            for h, (sa, vm) in enumerate(dmas):
                st.gaps[8 * h] += sa
                for m, x in enumerate(vm): st.gaps[8 * h + 1 + 2 * m].append(x)
        else: assert not dmas
        if nxt: st.place(g.tr(step + 1), 0 if len(dmas) != 1 else 1, 12)
        return st

    def gelu(g, acc):
        q = []
        for m in range(2):
            for nt in range(4):
                d = acc + (2 * m * 4 + nt) * 4
                zs = [d + i for i in range(4)] + [d + 16 + i for i in range(4)]
                for p in range(4):
                    a, b = zs[2 * p], zs[2 * p + 1]; x, y = GT + 2 * (p & 1), GT + 1 + 2 * (p & 1)
                    q += [V(f"v_fma_f32 v{x}, v{a}, -v{a}, {sNB}"), V(f"v_fma_f32 v{y}, v{b}, -v{b}, {sNB}"),
                          V(f"v_mul_f32 v{x}, v{x}, v{a}"), V(f"v_mul_f32 v{y}, v{y}, v{b}"),
                          V(f"v_exp_f32 v{x}, v{x}"), V(f"v_exp_f32 v{y}, v{y}"),
                          V(f"v_add_f32 v{x}, 1.0, v{x}"), V(f"v_add_f32 v{y}, 1.0, v{y}"),
                          V(f"v_rcp_f32 v{x}, v{x}"), V(f"v_rcp_f32 v{y}, v{y}"),
                          V(f"v_mul_f32 v{x}, v{x}, v{a}"), V(f"v_mul_f32 v{y}, v{y}, v{b}"),
                          V(f"v_cvt_pk_bf16_f32 v{d+p}, v{x}, v{y}")]
        return q
    def hwrite(g, acc, u, tag):
        return [DS(f"ds_write_b128 v{vHW}, {v4(acc + (2*m*4+nt)*4)} offset:{u*8192 + (m*4+nt)*1024}", tag) for m in range(2) for nt in range(4)]
    def bias_load(g, u):
        return [S(f"s_add_u32 {t0s}, {sBI}, {u*128}")] + \
               [VM(f"buffer_load_dwordx2 {v2(BRAW+2*t)}, v49, {B1}, {t0s} offen offset:{32*t}", f"BI{u}") for t in range(4)]
    def bias_prep(g, u):
        q = [W(f"BI{u}")]
        for i in range(8):
            q += [V(f"v_lshlrev_b32 v{BIAS+2*i}, 16, v{BRAW+i}"), V(f"v_and_b32 v{BIAS+2*i+1}, {sMK}, v{BRAW+i}")]
        for i in range(16): q.append(V(f"v_mul_f32 v{BIAS+i}, {sA}, v{BIAS+i}"))
        return q
    def poll(g, ld, regs_, tag):
        def chk(e):
            ok, slow, loop = g.label("Pk"), g.label("Ps"), g.label("Pl")
            def cmp(A):
                A(f"v_cmp_ne_u32 vcc, {sTAG}, v{regs_[0]}")
                if len(regs_) > 1:
                    A(f"v_cmp_ne_u32 s[80:81], {sTAG}, v{regs_[1]}"); A("s_or_b64 vcc, vcc, s[80:81]")
                else: A("s_cmp_lg_u64 vcc, 0")
            e.wait(tag); cmp(e.A); e.A(f"s_cbranch_scc1 {slow}"); e.A(f"{ok}:")
            o = g.ool.append
            o(f"{slow}:"); o(f"s_movk_i32 {sCNT}, 20000"); o(f"{loop}:")
            o(ld); o("s_waitcnt vmcnt(0)"); cmp(o); o(f"s_cbranch_scc0 {ok}")
            o(f"s_sub_u32 {sCNT}, {sCNT}, 1"); o(f"s_cmp_lg_u32 {sCNT}, 0"); o(f"s_cbranch_scc1 {loop}"); o(f"s_branch {ok}")
        return VM(ld, tag), ('fn', chk)
    def flag(g, soff, wait):
        return [W(wait), VM(f"buffer_store_dword v50, v{vF0}, {WS}, {soff} offen sc1")]
    def stamp(g, e, nm):
        if not g.o['ts'] or nm not in g.o['ts']: return
        i = g.o['ts'].index(nm)
        if g.o.get('tsw'): e.A("s_waitcnt lgkmcnt(0)")
        if i > 0: e.A(f"s_mov_b32 s{90+i-1}, s88")
        e.A("s_memtime s[88:89]")
    def SS(g, nm): return ('fn', lambda e: g.stamp(e, nm))
    def stamp_out(g, e):
        if not g.o['ts']: return
        n = len(g.o['ts']) - 1
        e.A("s_memrealtime s[78:79]"); e.A("s_waitcnt lgkmcnt(0)"); e.A(f"s_mov_b32 s{90+n}, s88")
        e.A("v_mov_b32 v60, 0")
        for i in range(n + 1): e.A(f"v_writelane_b32 v60, s{90+i}, {i}")
        e.A("v_writelane_b32 v60, s101, 14"); e.A("v_writelane_b32 v60, s78, 15")
        e.A(f"v_lshlrev_b32 v61, 2, v{vL}"); e.A(f"v_cmp_gt_u32 vcc, 16, v{vL}"); e.A(f"v_mov_b32 v62, {OOB}"); e.A("s_nop 0"); e.A("v_cndmask_b32 v61, v62, v61, vcc")
        e.A(f"s_lshl_b32 {t1s}, s2, 2"); e.A(f"s_add_u32 {t1s}, {t1s}, {sW}"); e.A(f"s_lshl_b32 {t1s}, {t1s}, 6"); e.A(f"s_add_u32 {t1s}, {t1s}, 0x3000000")
        e.vmop(f"buffer_store_dword v60, v61, {WS}, {t1s} offen")
        if g.o.get('tsd'):
            e.A("s_load_dwordx2 s[52:53], s[0:1], 96"); e.A("s_mov_b32 s54, 64"); e.A("s_mov_b32 s55, 0x20000")
            e.A("v_subrev_u32 v62, s90, v60"); e.A("s_not_b32 s101, s101"); e.A("v_writelane_b32 v62, s101, 14"); e.A("v_writelane_b32 v62, s78, 15")
            for i in range(n + 1, 14): e.A(f"v_writelane_b32 v62, 0, {i}")
            e.A("s_waitcnt lgkmcnt(0)")
            e.vmop(f"buffer_atomic_umax v62, v61, s[52:55], 0 offen")

    def prologue(g, e):
        A = e.A
        A("s_cmp_ge_u32 s2, 256"); A("s_cbranch_scc1 L_end")
        if g.o['ts']: A("s_memrealtime s[80:81]"); g.stamp(e, 'start')
        for srd, off in ((8, 0), (20, 56), (28, 104), (12, 8), (16, 16), (48, 24), (40, 64), (36, 32), (52, 40), (24, 72), (44, 80), (32, 88)):
            A(f"s_load_dwordx2 s[{srd}:{srd+1}], s[0:1], {off}")
        if g.o['cpf']:
            A("s_getpc_b64 s[76:77]"); A("L_pc:"); A("s_mov_b32 s78, L_codeend-L_pc"); A("s_mov_b32 s79, 0x20000"); A("v_lshlrev_b32 v2, 7, v0")
            for i in range(3):
                A(f"s_mov_b32 {t0s}, {i*32768}"); e.vmop(f"buffer_load_dword v191, v2, s[76:79], {t0s} offen")
        A(f"v_lshrrev_b32 v1, 6, v0"); A(f"v_and_b32 v{vL}, 63, v0"); A(f"v_readfirstlane_b32 {sW}, v1")
        A(f"s_and_b32 {t0s}, s2, 7"); A(f"s_lshr_b32 {t1s}, s2, 3")
        A(f"s_and_b32 {sT}, {t0s}, 1"); A(f"s_lshl_b32 {sT}, {sT}, 4"); A(f"s_lshr_b32 {t2s}, {t1s}, 1"); A(f"s_add_u32 {sT}, {sT}, {t2s}")
        A(f"s_and_b32 {sJ}, {t0s}, 6"); A(f"s_and_b32 {t2s}, {t1s}, 1"); A(f"s_add_u32 {sJ}, {sJ}, {t2s}")
        for srd, n in ((8, 2359296), (12, 2359296), (16, 2359296), (20, 5308416), (24, 5308416), (28, 0x10000000), (32, 2359296), (36, 2359296), (40, 9216), (44, 1152), (48, 4608)):
            A(f"s_mov_b32 s{srd+2}, {n}"); A(f"s_mov_b32 s{srd+3}, 0x20000")
        A(f"v_lshrrev_b32 v1, 2, v{vL}"); A("v_mul_u32_u24 v1, 1152, v1"); A(f"v_and_b32 v2, 3, v{vL}"); A("v_lshl_add_u32 v1, v2, 4, v1")
        A(f"s_lshl_b32 {t0s}, {sT}, 2"); A(f"s_add_u32 {t0s}, {t0s}, {sW}"); A(f"s_mul_i32 {t0s}, {t0s}, 18432")
        RAW = 48; LO = [120 + i for i in range(8)] + [192 + i for i in range(64)]
        A("s_waitcnt lgkmcnt(0)")
        if g.o['ts']: A("s_mov_b32 s101, s80")
        for m in range(18): e.vmop(f"buffer_load_dwordx4 {v4(RAW+4*m)}, v1, {X}, {t0s} offen offset:{64*m}", f"X{m}")
        g.stamp(e, 'p1')
        A(f"v_lshrrev_b32 v16, 5, v{vL}"); A(f"v_bfe_u32 v17, v{vL}, 3, 2"); A("v_lshl_add_u32 v16, v16, 3, v17")
        A(f"v_bfe_u32 v17, v{vL}, 4, 2"); A("v_lshlrev_b32 v17, 1, v17"); A(f"v_and_b32 v18, 7, v{vL}"); A("v_xor_b32 v17, v17, v18"); A("v_lshlrev_b32 v17, 4, v17")
        A(f"s_movk_i32 {t0s}, 9216"); A(f"v_mad_u32_u24 v{vW1}, v16, {t0s}, v17")
        for m in range(1, 4): A(f"v_add_u32 v{vW1+m}, {(16*(m&1)+4*(m>>1))*9216-1024*m}, v{vW1}")
        A(f"s_mul_i32 {sR}, {sW}, {RGS}"); A(f"s_add_u32 {sR}, {sR}, {RG0}")
        A(f"s_lshl_b32 {t1s}, {sW}, 1"); A(f"s_add_u32 {t1s}, {t1s}, 1"); A(f"s_cmp_eq_u32 {sW}, 0"); A(f"s_cselect_b32 {t1s}, 0, {t1s}")
        A(f"s_mul_i32 {sBI}, {sJ}, 1152"); A(f"s_lshl_b32 {t2s}, {t1s}, 7"); A(f"s_add_u32 {sBI}, {sBI}, {t2s}"); A(f"s_mov_b32 {sW1B}, {sBI}")
        for s in range(g.o['npre']):
            sa, vm = g.dma_w(s); e.items(sa); e.items(vm)
        g.stamp(e, 'p2')
        A(f"v_lshrrev_b32 v16, 3, v{vL}"); A(f"s_movk_i32 {t0s}, 1152"); A(f"v_mad_u32_u24 v{vW2}, v16, {t0s}, v17")
        for m in range(1, 4): A(f"v_add_u32 v{vW2+m}, {8*m*1152-1024*m}, v{vW2}")
        A(f"v_lshrrev_b32 v16, 4, v{vL}"); A("v_lshlrev_b32 v17, 1, v16"); A(f"v_xor_b32 v17, v17, v{vL}"); A(f"v_lshlrev_b32 v{vXH}, 4, v17")
        A(f"v_add_u32 v{vXH2}, 0x10000, v{vXH}"); A(f"s_lshl_b32 {t2s}, {t1s}, 13"); A(f"v_add_u32 v{vHW}, {t2s}, v{vXH}")
        A(f"v_cmp_eq_u32 vcc, 0, v{vL}"); A(f"v_mov_b32 v17, {OOB}"); A("v_mov_b32 v19, 0"); A(f"v_cndmask_b32 v{vF0}, v17, 0, vcc")
        e.vmop(f"buffer_load_dword v190, v19, {WS}, 0 offen sc1", "GEN")
        A("v_lshlrev_b32 v18, 3, v16")
        for t in range(4): e.vmop(f"buffer_load_dwordx2 {v2(BRAW+2*t)}, v18, {B1}, {sBI} offen offset:{32*t}", "BI0")
        A(f"s_and_b32 {t0s}, {sT}, 15"); A(f"s_mul_i32 {t0s}, {t0s}, {36*9216}"); A(f"s_add_u32 {t0s}, {t0s}, {sW1B}")
        A(f"v_min_u32 v16, 35, v{vL}"); A("v_mul_u32_u24 v16, 9216, v16")
        e.vmop(f"buffer_load_dword v191, v16, {W1}, {t0s} offen")
        A(f"v_lshrrev_b32 v17, 3, v{vL}"); A("v_mul_u32_u24 v17, 9216, v17"); A(f"v_and_b32 v18, 7, v{vL}"); A("v_lshl_add_u32 v17, v18, 2, v17")
        A(f"s_mul_i32 {t2s}, {sT}, 73728"); A(f"s_lshl_b32 {t3s}, {sJ}, 7"); A(f"s_add_u32 {t3s}, {t3s}, {t2s}"); A(f"s_lshl_b32 {t4s}, {sW}, 5"); A(f"s_add_u32 {t3s}, {t3s}, {t4s}")
        A(f"v_add_u32 v17, {t3s}, v17"); A("v_subrev_u32 v19, 3456, v17"); A(f"s_movk_i32 {t3s}, 4608")
        for i in range(3): e.vmop(f"buffer_load_dword v{128+i}, v19, {K_}, 0 offen offset:{1152*i}", "KV")
        for i in range(8): e.vmop(f"buffer_load_dword v{131+i}, v17, {K_}, {t3s if i >= 4 else 0} offen offset:{1152*(i&3)}", "KV")
        for i in range(8): e.vmop(f"buffer_load_dword v{139+i}, v17, {V_}, {t3s if i >= 4 else 0} offen offset:{1152*(i&3)}", "KV")
        A("v_lshlrev_b32 v18, 4, v18"); A(f"s_lshl_b32 {t3s}, {sJ}, 9"); A(f"s_lshl_b32 {t4s}, {sW}, 7"); A(f"s_add_u32 {t3s}, {t3s}, {t4s}")
        e.vmop(f"buffer_load_dwordx4 {v4(148)}, v18, {SH}, {t3s} offen", "KV")
        g.stamp(e, 'p3')
        A(f"s_lshl_b32 {t3s}, {sJ}, 4"); A(f"s_lshl_b32 {t4s}, {sW}, 2"); A(f"s_add_u32 {t3s}, {t3s}, {t4s}"); A(f"s_add_u32 {t3s}, {t3s}, 1024")
        A(f"s_add_u32 {t4s}, {t3s}, {t2s}")
        A(f"v_mul_u32_u24 v17, 1152, v{vL}"); A(f"v_add_u32 v17, {t4s}, v17")
        for i in range(3): A(f"v_subrev_u32 v{20+i}, {1152*(3-i)}, v17")
        for i in range(3): e.vmop(f"buffer_load_dword v{184+i}, v{20+i}, {K_}, 0 offen", "KV")
        e.vmop(f"buffer_load_dword v187, v17, {K_}, 0 offen", "KV")
        e.vmop(f"buffer_load_dword v188, v17, {V_}, 0 offen", "KV")
        A(f"s_lshl_b32 {t3s}, {t3s}, 2"); A("v_mov_b32 v19, 0")
        e.vmop(f"buffer_load_dwordx4 {v4(40)}, v19, {SH}, {t3s} offen", "KV")
        e.vmop(f"buffer_load_dword v191, v16, {W1}, {t0s} offen offset:128")
        e.vmop(f"buffer_load_dword v191, v16, {W1}, {t0s} offen offset:256")
        g.stamp(e, 'p4')
        A(f"s_lshl_b32 {sCL}, {sT}, 1"); A(f"s_add_u32 {sCL}, {sCL}, {sW}"); A(f"s_sub_u32 {sCL}, {sCL}, 1"); A(f"s_max_i32 {sCL}, {sCL}, 0")
        A(f"s_lshl_b32 {sC}, {sJ}, 6"); A(f"s_add_u32 {sC}, {sC}, {sCL}")
        A(f"s_lshr_b32 {t0s}, {sT}, 2"); A(f"s_add_u32 {t2s}, {t0s}, 64"); A(f"s_lshl_b32 {t3s}, {sJ}, 3"); A(f"s_add_u32 {t3s}, {t3s}, {t0s}"); A(f"s_add_u32 {t3s}, {t3s}, 512")
        A(f"s_cmp_eq_u32 {sW}, 3"); A(f"s_cselect_b32 {sCL}, {t2s}, {sCL}"); A(f"s_cselect_b32 {sC}, {t3s}, {sC}")
        A(f"s_cselect_b32 {sHC}, {sT}, 0"); A(f"s_and_b32 {sHC}, {sHC}, 3")
        A(f"s_lshl_b32 {t0s}, {sC}, 12"); A(f"s_load_dwordx2 s[54:55], s[36:37], {t0s}")
        A(f"s_lshr_b32 {t2s}, {sC}, 1"); A(f"s_lshl_b32 {t2s}, {t2s}, 2"); A(f"s_load_dword s56, s[52:53], {t2s}")
        A(f"v_and_b32 v16, 31, v{vL}"); A("v_lshlrev_b32 v16, 7, v16")
        e.vmop(f"buffer_load_dword v191, v16, {SSM}, {t0s} offen")
        A(f"s_mov_b32 {sNB}, {f2u(-BETA):#x}"); A(f"s_mov_b32 {sA}, {f2u(AC):#x}"); A(f"s_mov_b32 {sMK}, 0xffff0000"); A(f"s_mov_b32 {sIA}, {f2u(1/AC):#x}")
        A(f"v_lshrrev_b32 v16, 2, v{vL}"); A("v_lshlrev_b32 v16, 7, v16"); A(f"v_and_b32 v17, 3, v{vL}"); A("v_lshl_add_u32 v16, v17, 3, v16"); A(f"v_add_u32 v16, {sR}, v16")
        A(f"v_bfe_u32 v17, v{vL}, 3, 2")
        for t in range(4):
            A(f"v_xor_b32 v18, {t}, v17"); A(f"v_lshl_add_u32 v{vTR+t}, v18, 5, v16")
        A(f"s_mul_i32 {t0s}, {sJ}, 663552")
        A(f"s_add_u32 {t2s}, {sJ}, {sW}"); A(f"s_and_b32 {t2s}, {t2s}, 7"); A(f"s_xor_b32 {t3s}, {t2s}, 4")
        A(f"s_cmp_eq_u32 {sW}, 0"); A(f"s_cselect_b32 {t2s}, 8, {t2s}")
        A(f"s_lshl_b32 {sG1}, {t2s}, 7"); A(f"s_add_u32 {sG1}, {sG1}, {t0s}")
        A(f"s_lshl_b32 {sG2}, {t3s}, 7"); A(f"s_add_u32 {sG2}, {sG2}, {t0s}")
        A(f"s_lshl_b32 {sGO}, {sJ}, 7"); A(f"s_add_u32 {sGO}, {sGO}, {t0s}")
        A(f"s_mul_i32 {t0s}, {sT}, 9")
        for gr, pb in ((t2s, sPB1), (t3s, sPB2)):
            A(f"s_add_u32 {pb}, {t0s}, {gr}"); A(f"s_lshl_b32 {pb}, {pb}, 3"); A(f"s_add_u32 {pb}, {pb}, {sJ}"); A(f"s_lshl_b32 {pb}, {pb}, 13"); A(f"s_add_u32 {pb}, {pb}, {P0}")
        A(f"s_lshl_b32 {t0s}, {sT}, 11"); A(f"s_add_u32 {t0s}, {t0s}, {TA0}")
        A(f"s_sub_u32 {t4s}, {sW}, 1"); A(f"s_cmp_eq_u32 {sW}, 0"); A(f"s_cselect_b32 {t4s}, {sJ}, {t4s}"); A(f"s_lshl_b32 {t4s}, {t4s}, 2")
        A(f"s_lshl_b32 {sFL1}, {t2s}, 7"); A(f"s_add_u32 {sFL1}, {sFL1}, {t0s}"); A(f"s_add_u32 {sFL1}, {sFL1}, {t4s}")
        A(f"s_lshl_b32 {sFL2}, {t3s}, 7"); A(f"s_add_u32 {sFL2}, {sFL2}, {t0s}"); A(f"s_lshl_b32 {t4s}, {sW}, 2"); A(f"s_add_u32 {sFL2}, {sFL2}, {t4s}"); A(f"s_add_u32 {sFL2}, {sFL2}, 16")
        g.stamp(e, 'p5')
        A("s_waitcnt lgkmcnt(0)")
        A(f"s_and_b32 {t0s}, {sC}, 1"); A(f"s_lshl_b32 {t0s}, {t0s}, 4"); A(f"s_lshr_b32 s56, s56, {t0s}"); A("s_lshl_b32 s56, s56, 16")
        A(f"s_lshl_b32 {t0s}, s54, 16"); A(f"v_mov_b32 v16, {t0s}"); A("v_add_f32 v16, s56, v16"); A("v_cvt_pk_bf16_f32 v16, v16, v16")
        A(f"v_mov_b32 v17, s54"); A(f"v_bfi_b32 v16, {sMK}, v17, v16"); A("v_mov_b32 v17, s55")
        A(f"v_bfe_u32 v18, v{vL}, 2, 2"); A("v_sub_u32 v19, 3, v18"); A("v_lshlrev_b32 v19, 4, v19")
        A(f"v_lshlrev_b64 {v2(vFX)}, v19, v[16:17]")
        A(f"v_and_b32 v19, 3, v{vL}"); A("v_cmp_eq_u32 vcc, 3, v19"); A(f"v_mul_u32_u24 v18, {FP}, v18"); A("v_lshl_add_u32 v18, v19, 3, v18")
        A(f"v_cndmask_b32 v{vFX}, 0, v{vFX}, vcc"); A(f"v_cndmask_b32 v{vFX+1}, 0, v{vFX+1}, vcc"); A(f"v_add_u32 v{vFXA}, {sR}, v18")
        g.stamp(e, 'p6')
        A(f"s_mov_b32 {t0s}, 0x3f803f80")
        for i in range(4): A(f"v_mov_b32 v{20+i}, 0")
        for m in range(18):
            e.wait(f"X{m}")
            if m == 0: g.stamp(e, 'x0')
            if m == 17: g.stamp(e, 'x17')
            for i in range(4):
                r = RAW + 4 * m + i; lo = LO[4 * m + i]
                A(f"v_dot2c_f32_bf16 v{20+(i&1)}, {t0s}, v{r}"); A(f"v_dot2c_f32_bf16 v{22+(i&1)}, v{r}, v{r}")
                A(f"v_lshlrev_b32 v{lo}, 16, v{r}"); A(f"v_and_b32 v{r}, {sMK}, v{r}")
        g.stamp(e, 'ln1')
        A(f"v_and_b32 v24, 3, v{vL}"); A(f"v_lshrrev_b32 v25, 2, v{vL}")
        A("v_add_f32 v20, v20, v21"); A("v_add_f32 v22, v22, v23")
        A("v_lshlrev_b32 v26, 1, v24"); A("v_xor_b32 v26, v26, v25")
        A("v_add_f32_dpp v20, v20, v20 quad_perm:[1,0,3,2] row_mask:0xf bank_mask:0xf"); A("v_add_f32_dpp v22, v22, v22 quad_perm:[1,0,3,2] row_mask:0xf bank_mask:0xf")
        A("v_lshl_add_u32 v24, v24, 4, v26"); A(f"s_lshl_b32 {t2s}, {sW}, 10")
        A("v_add_f32_dpp v20, v20, v20 quad_perm:[2,3,0,1] row_mask:0xf bank_mask:0xf"); A("v_add_f32_dpp v22, v22, v22 quad_perm:[2,3,0,1] row_mask:0xf bank_mask:0xf")
        A(f"v_lshl_add_u32 v24, v24, 4, {t2s}")
        A(f"v_mul_f32 v20, {f2u(1/576):#x}, v20"); A(f"v_mul_f32 v22, {f2u(1/576):#x}, v22")
        A("v_fma_f32 v22, -v20, v20, v22"); A("v_max_f32 v22, 0, v22")
        A("v_cvt_pk_bf16_f32 v21, v20, v22")
        A(f"v_and_b32 v22, {sMK}, v21"); A("v_lshlrev_b32 v20, 16, v21")
        A(f"v_add_f32 v22, {f2u(1e-5):#x}, v22"); A("v_cvt_pk_bf16_f32 v22, v22, v22"); A(f"v_and_b32 v22, {sMK}, v22")
        A("v_sqrt_f32 v22, v22"); A(f"s_lshl_b32 {t2s}, {sW}, 7"); A("v_cvt_pk_bf16_f32 v22, v22, v22"); A(f"v_and_b32 v22, {sMK}, v22")
        A("v_rcp_f32 v22, v22"); A(f"s_add_u32 {t2s}, {t2s}, {STATS}"); A(f"v_mul_f32 v22, {sA}, v22"); A("v_mul_f32 v23, -v20, v22")
        A(f"v_lshl_add_u32 v25, v25, 3, {t2s}"); A("v_add_u32 v27, 0x8000, v24")
        for m in range(18):
            r = RAW + 4 * m; lo = LO[4 * m]
            for h in (0, 2):
                A(f"v_pk_fma_f32 {v2(lo+h)}, {v2(lo+h)}, v[22:23], v[22:23] op_sel:[0,0,1] op_sel_hi:[1,0,1]")
                A(f"v_pk_fma_f32 {v2(r+h)}, {v2(r+h)}, v[22:23], v[22:23] op_sel:[0,0,1] op_sel_hi:[1,0,1]")
            for i in range(4): A(f"v_cvt_pk_bf16_f32 v{r+i}, v{lo+i}, v{r+i}")
            e.dsop(f"ds_write_b128 v{24 if m < 8 else 27}, {v4(r)} offset:{(m if m < 8 else m - 8)*4096}")
        g.stamp(e, 'lnw')
        e.dsop("ds_write_b64 v25, v[22:23]")
        A(f"v_min_u32 v26, 59, v{vL}"); A(f"s_add_u32 {t2s}, {sR}, {GB+4096}"); A(f"v_lshl_add_u32 v26, v26, 3, {t2s}")
        A("v_mov_b32 v28, 0"); A("v_mov_b32 v29, 0")
        e.dsop("ds_write_b64 v26, v[28:29]")
        for s in range(g.o['npre'], 5):
            sa, vm = g.dma_w(s); e.items(sa); e.items(vm)
        e.items(g.bias_prep(0))
        A(f"v_lshlrev_b32 v48, 4, v{vL}"); A(f"v_lshrrev_b32 v49, 4, v{vL}"); A("v_lshlrev_b32 v49, 3, v49")
        e.wait(None, 'ALL'); e.bar(); g.stamp(e, 'ln2')
        e.items(g.fragread(0, 0, "Q0"))
        e.wait("D0"); e.items(g.tr(0)); e.items(g.fragread(1, 1, "Q1"))

    def kv_fill(g):
        q = [W(["KV", "GEN"])]
        q += [V(f"v_add_u32 v50, {TAGC:#x}, v190"), V("v_mov_b32 v51, 0"), V(f"v_readfirstlane_b32 {sTAG}, v50")]
        def ext(d, s, ch): return V(f"v_lshlrev_b32 v{d}, 16, v{s}") if ch == 0 else V(f"v_and_b32 v{d}, {sMK}, v{s}")
        for ch in range(2):
            for i in range(4): q.append(ext(152 + i, 148 + 2 * ch + (i >> 1), i & 1))
            for i in range(11): q.append(ext(156 + i, 128 + i, ch))
            for i in range(8):
                o = 167 + i
                q += [V(f"v_mul_f32 v{o}, v{156+i}, v155"), V(f"v_fmac_f32 v{o}, v{157+i}, v154"), V(f"v_fmac_f32 v{o}, v{158+i}, v153"),
                      V(f"v_fmac_f32 v{o}, v{159+i}, v152"), ext(175, 139 + i, ch), V(f"v_mul_f32 v{o}, v{o}, v175")]
            for d in range(4): q.append(V(f"v_cvt_pk_bf16_f32 v{176+4*ch+d}, v{167+7-2*d}, v{167+6-2*d}"))
        for ch in range(2):
            o = 167 + ch
            for i in range(4): q.append(ext(152 + i, 40 + 2 * ch + (i >> 1), i & 1))
            for i in range(5): q.append(ext(156 + i, 184 + i, ch))
            q += [V(f"v_mul_f32 v{o}, v156, v155"), V(f"v_fmac_f32 v{o}, v157, v154"), V(f"v_fmac_f32 v{o}, v158, v153"),
                  V(f"v_fmac_f32 v{o}, v159, v152"), V(f"v_mul_f32 v{o}, v{o}, v160")]
        q.append(V("v_cvt_pk_bf16_f32 v167, v167, v168"))
        q += [V(f"v_and_b32 v170, 7, v{vL}"), V(f"v_lshrrev_b32 v171, 3, v{vL}"), V("v_sub_u32 v171, 7, v171"), V("v_lshlrev_b32 v171, 4, v171"),
              V("v_lshl_add_u32 v170, v170, 13, v171"), V(f"v_sub_u32 v171, 63, v{vL}"), V("v_lshlrev_b32 v171, 1, v171")]
        q += [S(f"s_mul_i32 {t1s}, {sJ}, {72*4096}"), S(f"s_sub_u32 {t2s}, 31, {sT}"), S(f"s_lshl_b32 {t2s}, {t2s}, 7"), S(f"s_add_u32 {t1s}, {t1s}, {t2s}"),
              S(f"s_add_u32 {t1s}, {t1s}, {KV0}"), S(f"s_lshl_b32 {t2s}, {sW}, 16"), S(f"s_add_u32 {t2s}, {t2s}, {t1s}"),
              VM(f"buffer_store_dwordx4 {v4(176)}, v170, {WS}, {t2s} offen sc1"), S(f"s_add_u32 {t2s}, {t2s}, 4096"),
              VM(f"buffer_store_dwordx4 {v4(180)}, v170, {WS}, {t2s} offen sc1"),
              S(f"s_lshl_b32 {t2s}, {sW}, 13"), S(f"s_add_u32 {t2s}, {t2s}, {t1s}"), S(f"s_add_u32 {t2s}, {t2s}, {64*4096}"),
              VM(f"buffer_store_short v167, v171, {WS}, {t2s} offen sc1"), S(f"s_add_u32 {t2s}, {t2s}, 4096"),
              VM(f"buffer_store_short_d16_hi v167, v171, {WS}, {t2s} offen sc1", "KVS")]
        return q
    def kv_flag(g):
        return [S(f"s_lshl_b32 {t1s}, {sJ}, 10"), S(f"s_lshl_b32 {t2s}, {sT}, 4"), S(f"s_add_u32 {t1s}, {t1s}, {t2s}"),
                S(f"s_lshl_b32 {t2s}, {sW}, 2"), S(f"s_add_u32 {t1s}, {t1s}, {t2s}"), S(f"s_add_u32 {t1s}, {t1s}, {GA0}")] + g.flag(t1s, "KVS")

    def unitA1(g, e):
        steps = []
        for s in range(18):
            st = g.gemm_step(s, s, ACC[0], 'bias' if s == 0 else None, [g.dma_w(s + 5)], extra_lt=[f"Q{s}"])
            if s + 2 < 18: st.place(g.fragread(s + 2, s + 2, f"Q{s+2}"), 12, 16)
            steps.append(st)
        fill = [HOLD(16)] + g.bias_load(1) + g.kv_fill() + [HOLD(16 * 13)] + g.kv_flag() + g.bias_prep(1)
        run_steps(e, steps, fill)

    def unitA2(g, e, role):
        steps = []; fill = [HOLD(2)]
        for s in range(18, 36):
            if role == 0: d = [g.dma_w(s + 5)]
            elif s + 5 < 36: d = [g.dma_w(s + 5)]
            elif role == 1 and s < 35: d = [g.dma_f(s - 30)]
            else: d = []
            st = g.gemm_step(s, s - 18, ACC[1], 'bias' if s == 18 else None, d, nxt=(role == 0 or s < 35))
            if s == 19: st.top.append(('bar',))
            steps.append(st)
        gl = g.gelu(ACC[0])
        if role == 0:
            fill += gl[:26] + [HOLD(16)] + g.bias_load(2) + gl[26:] + g.bias_prep(2) + [('grp', g.hwrite(ACC[0], 0, "HW0"))]
        elif role == 1:
            pi, pc = g.poll(f"buffer_load_dwordx2 v[52:53], v51, {WS}, {t3s} offen sc1", [52, 53], "PKV")
            pre = [V(f"v_lshlrev_b32 v51, 3, v{vL}"), S(f"s_lshl_b32 {t3s}, {sJ}, 10"), S(f"s_add_u32 {t3s}, {t3s}, {GA0}"), S(f"s_lshl_b32 {t4s}, {sC}, 12")]
            steps[6].place([pi], 12, 16)
            gld = [S(f"s_mul_i32 {t1s}, {sJ}, 72"), S(f"s_add_u32 {t1s}, {t1s}, {sCL}"), S(f"s_lshl_b32 {t1s}, {t1s}, 12"), S(f"s_add_u32 {t1s}, {t1s}, {KV0}")]
            steps[10].gaps[12] += gld + [pc]
            steps[11].place([VM(f"buffer_load_dwordx4 {a4(4*p)}, v48, {WS}, {t1s} offen offset:{1024*p} sc1", "GL") for p in range(4)], 12, 16)
            adr = [V(f"v_and_b32 v55, 3, v{vL}"), V(f"v_mul_u32_u24 v55, {FP}, v55"), V(f"v_bfe_u32 v56, v{vL}, 2, 2"), V("v_lshl_add_u32 v55, v56, 3, v55"),
                   V("v_lshl_add_u32 v55, v49, 1, v55"), V(f"v_add_u32 v56, {sR}, v55"),
                   V(f"v_and_b32 v55, 15, v{vL}"), V("v_lshlrev_b32 v55, 5, v55"), V("v_lshlrev_b32 v57, 1, v49"), V("v_sub_u32 v55, v57, v55"),
                   V(f"v_add_u32 v55, {GB+480}, v55"), V(f"v_add_u32 v57, {sR}, v55"),
                   V(f"v_add_u32 v54, {GB}, v48"), V(f"v_add_u32 v54, {sR}, v54")]
            fill += pre + adr + gl
            last = steps[-1]
            last.gaps[8] += [W('ALL')] + [DS(f"ds_write_b128 v54, {a4(4*p)} offset:{1024*p}") for p in range(4)] + [DS(f"ds_write_b64 v{vFXA}, {v2(vFX)}")]
            last.place(g.conv_reads(0), 9, 16)
        else:
            fill += gl
        run_steps(e, steps, fill)

    def conv_reads(g, b):
        p = b & 1; F = 128 + p * 64; Gr = F + 32; it = []
        def fr(u):
            t = 8 * u + b
            return [DS(f"ds_read_b64 a[{F+4*u}:{F+4*u+1}], v56 offset:{64*t}", f"C{b}"), DS(f"ds_read_b64 a[{F+4*u+2}:{F+4*u+3}], v56 offset:{64*t+8}", f"C{b}")]
        it += fr(0)
        for v in range(8): it.append(DS(f"ds_read_b128 {a4(Gr+4*v)}, v57 offset:{64*(b-8*v+56)}", f"C{b}"))
        for u in range(1, 8): it += fr(u)
        return it
    def cacc(g, c): return ACC[0] + 16 + (c >> 2) * 32 + (c & 3) * 4
    def unitConv(g, e):
        steps = []
        for b in range(8):
            p = b & 1; F = 128 + p * 64; Gr = F + 32; mf = []
            for u in range(8):
                for v in range(8 - u):
                    d = v4(g.cacc(u + v)); c = "0" if (b == 0 and u == 0) else d
                    mf.append(f"{MF} {d}, {a4(Gr+4*v)}, {a4(F+4*u)}, {c}")
            st = Step(mf); st.top.append(g.SS(f"s{36+2*b}")); st.top.append(W(None, f"C{b}"))
            if b < 7: st.place(g.conv_reads(b + 1), 0, 28)
            if b == 0: st.place(g.hwrite(ACC[0], 0, "HW0"), 28, 36)
            if b == 2: st.top.append(('bar',))
            if 2 <= b < 6:
                st.place(g.fragread(2 * (b - 2), KSB[2 * (b - 2)], f"H{2*(b-2)}") + g.fragread(2 * (b - 2) + 1, KSB[2 * (b - 2) + 1], f"H{2*(b-2)+1}"), 28, 36)
            steps.append(st)
        fill = [HOLD(2)] + g.gelu(ACC[1])
        run_steps(e, steps[:7], fill)
        st = steps[7]
        st.place(g.hwrite(ACC[1], 1, "HW1"), 0, 8)
        for i in range(5):
            sa, vm = g.dma_w(54 + i)
            st.gaps[8 + 5 * i] += sa
            for m in range(4): st.gaps[9 + 5 * i + m].append(vm[m])
        run_steps(e, [st], [])
        e.wait("D54"); e.items(g.tr(54))
    def unitIdle(g, e):
        e.A("s_nop 7")
        e.items(g.hwrite(ACC[0], 0, "HW0"))
        e.A(f"s_and_b32 {t0s}, {sT}, 15"); e.A(f"s_lshr_b32 {t1s}, {t0s}, 2"); e.A(f"s_sub_u32 {t0s}, {t0s}, {t1s}"); e.A(f"s_sub_u32 {t0s}, {t0s}, 1")
        e.A(f"s_mul_i32 {t0s}, {t0s}, 55296"); e.A(f"s_mul_i32 {t1s}, {sJ}, 663552"); e.A(f"s_add_u32 {t0s}, {t0s}, {t1s}")
        e.A(f"v_lshlrev_b32 v52, 7, v{vL}")
        for i in range(7):
            e.vmop(f"buffer_load_dword v53, v52, {W2}, {t0s} offen"); e.A(f"s_add_u32 {t0s}, {t0s}, 8192")
        e.wait(None, "HW0"); e.bar()
        e.items(g.gelu(ACC[1])); e.items(g.hwrite(ACC[1], 1, "HW1"))
        for b in range(8): e.items(g.fragread(b, KSB[b], f"H{b}"))
        for i in range(5):
            sa, vm = g.dma_w(54 + i); e.items(sa); e.items(vm)
        e.wait("D54"); e.items(g.tr(54))
    def unitA3(g, e):
        steps = []
        for s in range(36, 54):
            st = g.gemm_step(s, s - 36, ACC[0], 'bias' if s == 36 else None, [g.dma_w(s + 5)])
            if s == 36: st.top.insert(0, W(None, "HW0"))
            if s == 36 + 5: st.top.append(('bar',))
            b = s - 36 - 9
            if 0 <= b < 8: st.place(g.fragread(b, KSB[b], f"H{b}"), 12, 16)
            steps.append(st)
        fill = [HOLD(2)] + g.gelu(ACC[1]) + [('grp', g.hwrite(ACC[1], 1, "HW1"))]
        run_steps(e, steps, fill)

    def unitB1(g, e, role):
        steps = []
        for b in range(18):
            s = 54 + b
            st = g.gemm_step(s, b, ACC[1], 'zero' if b == 0 else None, [g.dma_w(s + 5)], extra_lt=[f"H{b}"] + (["HW1"] if b == 0 else []))
            if b == 4: st.top.append(('bar',))
            if 6 <= b < 14: st.place(g.fragread(b + 2, KSB[b + 2], f"H{b+2}"), 12, 16)
            if b == 15:
                if role == 0: st.top.append(W(None, "HW2"))
                st.top.append(('bar',))
                st.place(g.fragread(16, KSB[16], "H16"), 0, 8); st.place(g.fragread(17, KSB[17], "H17"), 12, 16)
            steps.append(st)
        if role == 0:
            fill = [HOLD(2)] + g.gelu(ACC[0]) + [('grp', g.hwrite(ACC[0], 2, "HW2"))]
            run_steps(e, steps[:15], fill, b_empty=16, b_full=12); run_steps(e, steps[15:], [])
        elif role == 1:
            fill = [HOLD(2), V(f"v_lshlrev_b32 v52, 3, v{vL}"),
                    S(f"s_mul_i32 {t1s}, {sJ}, 72"), S(f"s_add_u32 {t1s}, {t1s}, {sCL}"), S(f"s_lshl_b32 {t1s}, {t1s}, 12"), S(f"s_add_u32 {t1s}, {t1s}, {Y0}")]
            for c in range(8):
                d = g.cacc(c)
                fill += [V(f"v_cvt_pk_bf16_f32 v{d}, v{d}, v{d+1}"), V(f"v_cvt_pk_bf16_f32 v{d+1}, v{d+2}, v{d+3}"),
                         VM(f"buffer_store_dwordx2 {v2(d)}, v52, {WS}, {t1s} offen offset:{512*c} sc1", "YS")]
            fill += [HOLD(16 * 7), S(f"s_lshl_b32 {t1s}, {sJ}, 10"), S(f"s_lshl_b32 {t2s}, {sCL}, 2"), S(f"s_add_u32 {t1s}, {t1s}, {t2s}"), S(f"s_add_u32 {t1s}, {t1s}, {GA0+512}")] + g.flag(t1s, "YS")
            run_steps(e, steps, fill)
        else:
            run_steps(e, steps, [])

    def pstore(g, acc, base, tag):
        q = [S(f"s_add_u32 {t0s}, {base}, 4096")]
        for ct in range(4):
            for np_ in range(2):
                d = acc + (ct * 4 + 2 * np_) * 4; k = ct * 2 + np_
                for i in range(4): q.append(V(f"v_cvt_pk_bf16_f32 v{d+i}, v{d+2*i}, v{d+2*i+1}"))
                q.append(VM(f"buffer_store_dwordx4 {v4(d)}, v48, {WS}, {base if k < 4 else t0s} offen offset:{(k&3)*1024} sc1", tag))
        return q
    def padd(g, raw, dst, tmp):
        q = []
        for i in range(8):
            q += [V(f"v_lshlrev_b32 v{tmp}, 16, v{raw+i}"), V(f"v_and_b32 v{tmp+1}, {sMK}, v{raw+i}"),
                  V(f"v_add_f32 v{dst+2*i}, v{dst+2*i}, v{tmp}"), V(f"v_add_f32 v{dst+2*i+1}, v{dst+2*i+1}, v{tmp+1}")]
        return q
    def pload(g, rel, raw, tag):
        return [S(f"s_sub_u32 {t1s}, {sJ}, {rel}"), S(f"s_and_b32 {t1s}, {t1s}, 7"), S(f"s_lshl_b32 {t1s}, {t1s}, 13"), S(f"s_add_u32 {t1s}, {t1s}, {sPB1}"),
                VM(f"buffer_load_dwordx4 {v4(raw)}, v48, {WS}, {t1s} offen sc1", tag), VM(f"buffer_load_dwordx4 {v4(raw+4)}, v48, {WS}, {t1s} offen offset:1024 sc1", tag)]

    def own_tr(g, s):
        p = s & 1; it = []
        for kk in range(4):
            b = 4 * s + kk
            if b >= 18: break
            r = WB + p * 16 + kk * 4; a, off = (2, b * 4096) if b < 8 else (3, (b - 8) * 4096)
            it += [DS(f"ds_read_b64_tr_b16 {v2(r)}, v{a} offset:{off}", f"O{s}"), DS(f"ds_read_b64_tr_b16 {v2(r+2)}, v{a} offset:{off+2048}", f"O{s}")]
        return it
    def unitB2(g, e):
        OWN = BIAS
        steps = []
        nown = 0
        for b in range(18):
            s = 72 + b
            st = g.gemm_step(s, b, ACC[0], 'zero' if b == 0 else None, [g.dma_w(s + 5)] if b + 5 < 18 else [], nxt=b < 17)
            if b == 0: st.top.append(('bar',))
            if 1 <= b <= 14:
                n = 1 if b < 13 else 3
                gp = [15] if b < 13 else [3, 8, 13]
                for k in range(n):
                    st.gaps[gp[k]] += [S(f"s_add_u32 m0, {t4s}, {nown*4096}"), S(f"s_add_u32 {sSO}, {sGO}, {KSB[nown]*32*1152}"),
                                       VM(f"buffer_load_dwordx4 v0, {W2}, {sSO} offen lds", "DO")]
                    nown += 1
            if b == 17:
                st.top += [W("DO"), ('bar',)]
                st.place(g.own_tr(0), 0, 12)
            steps.append(st)
        assert nown == 18
        e.A(f"s_mul_i32 {t4s}, {sW}, 9216"); e.A(f"v_add_u32 v0, {t4s}, v{vW2}"); e.A(f"s_lshl_b32 {t4s}, {sW}, 10")
        f = [HOLD(2)] + g.pstore(ACC[1], sPB1, "PS1")
        f += [V(f"v_bfe_u32 v2, v{vL}, 3, 2"), V(f"v_xor_b32 v2, {sW}, v2"), V("v_lshlrev_b32 v2, 5, v2"), V(f"v_lshrrev_b32 v3, 2, v{vL}"), V("v_lshl_add_u32 v2, v3, 7, v2"),
              V(f"v_and_b32 v3, 3, v{vL}"), V("v_lshl_add_u32 v2, v3, 3, v2"), V("v_add_u32 v3, 0x8000, v2")]
        XR, YR, ST, B2R, B2A, PE = 128, 136, 144, 152, 154, 160
        f += [V(f"v_and_b32 v51, 15, v{vL}"), V("v_mul_u32_u24 v1, 1152, v51"), V("v_add_u32 v1, v1, v49"),
              V("v_lshlrev_b32 v51, 3, v51"),
              V(f"v_add_u32 v52, {STATS}, v51"),
              S(f"s_lshl_b32 {t2s}, {sJ}, 7"), S(f"s_lshl_b32 {t3s}, {sW}, 5"), S(f"s_add_u32 {t2s}, {t2s}, {t3s}"),
              S(f"s_mul_i32 {sXO}, {sT}, 73728"), S(f"s_add_u32 {sXO}, {sXO}, {t2s}"),
              VM(f"buffer_load_dwordx2 {v2(B2R)}, v49, {B2}, {t2s} offen", "XL")]
        for nt in range(4):
            f += [S(f"s_add_u32 {t1s}, {sXO}, {nt*18432}"), VM(f"buffer_load_dwordx2 {v2(XR+2*nt)}, v1, {X}, {t1s} offen", "XL"),
                  DS(f"ds_read_b64 {v2(ST+2*nt)}, v52 offset:{128*nt}", "STL")]
        G8X, G8Y, G8S, G8B, G8P, G8A = 32, 34, 38, 40, 56, 44
        f += [V("v_and_b32 v54, 8, v49"), V("v_sub_u32 v53, v1, v49"), V("v_add_u32 v53, v53, v54"),
              S(f"s_lshl_b32 {t2s}, {sJ}, 4"), S(f"s_add_u32 {t2s}, {t2s}, 1024"),
              VM(f"buffer_load_dwordx2 {v2(G8B)}, v54, {B2}, {t2s} offen", "XL"),
              S(f"s_lshl_b32 {t3s}, {sT}, 2"), S(f"s_add_u32 {t3s}, {t3s}, {sW}"), S(f"s_mul_i32 {t3s}, {t3s}, 18432"), S(f"s_add_u32 s75, {t3s}, {t2s}"),
              VM(f"buffer_load_dwordx2 {v2(G8X)}, v53, {X}, s75 offen", "XL"),
              S(f"s_lshl_b32 {t1s}, {sW}, 7"), V(f"v_add_u32 v52, {t1s}, v52"), DS(f"ds_read_b64 {v2(G8S)}, v52", "STL")]
        f += [S(f"s_lshl_b32 {t1s}, {sJ}, 10"), S(f"s_add_u32 {t1s}, {t1s}, {GA0+512}"),
              S(f"s_lshl_b32 {t2s}, {sT}, 11"), S(f"s_add_u32 {t2s}, {t2s}, {TA0}"), S(f"s_lshl_b32 {t3s}, {sJ}, 7"), S(f"s_add_u32 s76, {t3s}, {t2s}"),
              S(f"s_add_u32 {t2s}, {t2s}, {1024-36*8}"),
              V(f"v_lshlrev_b32 v42, 3, v{vL}"), V(f"v_add_u32 v55, {t1s}, v42"), V(f"v_add_u32 v42, {t2s}, v42"),
              V(f"v_cmp_gt_u32 vcc, 36, v{vL}"), V(f"v_min_u32 v43, 41, v{vL}"), V("v_lshlrev_b32 v43, 2, v43"), V("v_cndmask_b32 v55, v42, v55, vcc"),
              V(f"v_cmp_gt_u32 vcc, 40, v{vL}"), V("v_subrev_u32 v43, 160, v43"), V("v_add_u32 v43, s76, v43"), V("v_cndmask_b32 v55, v43, v55, vcc")]
        f += [HOLD(16 * 5)] + g.flag(sFL1, "PS1")
        f += [W("XL", "STL")]
        f += [V(f"v_lshlrev_b32 v{B2A}, 16, v{B2R}"), V(f"v_and_b32 v{B2A+1}, {sMK}, v{B2R}"), V(f"v_lshlrev_b32 v{B2A+2}, 16, v{B2R+1}"), V(f"v_and_b32 v{B2A+3}, {sMK}, v{B2R+1}")]
        for i in range(4): f.append(V(f"v_mul_f32 v{B2A+i}, {sA}, v{B2A+i}"))
        XN = 168
        for nt in range(4):
            for r in range(4):
                src = XR + 2 * nt + (r >> 1); o = 4 * nt + r
                f.append(V(f"v_lshlrev_b32 v{XN+o}, 16, v{src}") if r & 1 == 0 else V(f"v_and_b32 v{XN+o}, {sMK}, v{src}"))
                f.append(V(f"v_fma_f32 v{OWN+o}, v{XN+o}, {sA}, v{B2A+r}"))
                f.append(V(f"v_fma_f32 v{XN+o}, v{XN+o}, v{ST+2*nt}, v{ST+2*nt+1}"))
        pi, pc = g.poll(f"buffer_load_dwordx2 v[42:43], v55, {WS}, 0 offen sc1", [42, 43], "PE")
        f += [HOLD(16 * 8), pi]
        f += [V("v_lshl_add_u32 v52, v49, 11, v51"), V("v_lshl_add_u32 v54, v54, 11, v51"),
              V(f"v_lshrrev_b32 v51, 5, v{vL}"), V("v_lshlrev_b32 v51, 15, v51"), V("v_and_b32 v152, 0x1f0, v48"), V("v_add_u32 v51, v51, v152"),
              S(f"s_mul_i32 {sPB1}, {sT}, 9"), S(f"s_add_u32 s77, {sPB1}, 8"), S(f"s_add_u32 {sPB1}, {sPB1}, {sJ}"), S(f"s_lshl_b32 {sPB1}, {sPB1}, 16"),
              S(f"s_lshl_b32 {t1s}, {sW}, 11"), S(f"s_add_u32 {sPB1}, {sPB1}, {t1s}"), S(f"s_add_u32 {sPB1}, {sPB1}, {P0}"),
              S("s_lshl_b32 s77, s77, 16"), S(f"s_add_u32 s77, s77, {P0}"),
              S(f"s_lshr_b32 {t1s}, {sJ}, 1"), S(f"s_lshl_b32 {t1s}, {t1s}, 11"), S(f"s_add_u32 s77, s77, {t1s}"),
              S(f"s_lshr_b32 {t1s}, {sW}, 1"), S(f"s_lshl_b32 {t1s}, {t1s}, 10"), S(f"s_add_u32 s77, s77, {t1s}"),
              S(f"s_and_b32 {t1s}, {sJ}, 1"), S(f"s_lshl_b32 {t1s}, {t1s}, 9"), S(f"s_add_u32 s77, s77, {t1s}"),
              S(f"s_and_b32 {t1s}, {sW}, 1"), S(f"s_lshl_b32 s79, {t1s}, 4"), S("s_sub_u32 s79, 16, s79"), S(f"s_lshl_b32 {t1s}, {t1s}, 3"), S(f"s_add_u32 s77, s77, {t1s}"),
              S(f"s_mul_i32 s78, {sJ}, {72*4096}"), S(f"s_lshl_b32 {t1s}, {sT}, 7"), S(f"s_add_u32 s78, s78, {t1s}"), S(f"s_add_u32 s78, s78, {Y0}")]
        f += [HOLD(16 * 11), pc]
        f += [S(f"s_lshl_b32 {t2s}, {sW}, 16"), S(f"s_add_u32 {t2s}, {t2s}, s78")]
        for r in range(4): f += [S(f"s_add_u32 {t1s}, {t2s}, {4096*r}"), VM(f"buffer_load_dwordx2 {v2(YR+2*r)}, v52, {WS}, {t1s} offen sc1", "YL")]
        for k, raw in enumerate((160, 184, 128)): f += g.pload(k + 1, raw, f"PL{k}")
        f += [S(f"s_lshr_b32 {t2s}, {sW}, 1"), S(f"s_lshl_b32 {t2s}, {t2s}, 2"), S(f"s_add_u32 {t2s}, {t2s}, s78")]
        for r in range(4): f += [S(f"s_add_u32 {t1s}, {t2s}, {4096*(64+r)}"), VM(f"buffer_load_dword v{G8Y+r}, v54, {WS}, {t1s} offen sc1", "G8L")]
        for i in range(4): f += [S(f"s_add_u32 {t1s}, s77, {8192*i}"), VM(f"buffer_load_dwordx2 {v2(G8P+2*i)}, v51, {WS}, {t1s} offen sc1", "G8L")]
        f += [HOLD(16 * 15), W("YL")]
        for r in range(4):
            for nt in range(4):
                src = YR + 2 * r + (nt >> 1); o = 4 * nt + r
                f.append(V(f"v_lshlrev_b32 v152, 16, v{src}") if nt & 1 == 0 else V(f"v_and_b32 v152, {sMK}, v{src}"))
                f.append(V(f"v_fmac_f32 v{OWN+o}, v{XN+o}, v152"))
        for k, raw in enumerate((160, 184, 128)): f += [W(f"PL{k}")] + g.padd(raw, OWN, 152)
        run_steps(e, steps, f)
        e.A("s_nop 1"); g.stamp(e, 'B2')
        steps = []
        for s in range(5):
            p = s & 1; mf = []
            for kk in range(4):
                b = 4 * s + kk
                if b >= 18: break
                for nt in range(4): mf.append(f"{MF} {v4(OWN+4*nt)}, {v4(WB+p*16+kk*4)}, {qreg(b*4+nt)}, {v4(OWN+4*nt)}")
            st = Step(mf); st.top.append(W(None, f"O{s}")); st.force = True
            if s < 4: st.place(g.own_tr(s + 1), 0, 12)
            steps.append(st)
        f = g.pstore(ACC[0], sPB2, "PS2")
        f += [W("G8L")]
        for r in range(4):
            for i in range(4):
                src = G8P + 2 * i + (r >> 1); d = G8A + r if i == 0 else 152
                f.append(V(f"v_lshlrev_b32 v{d}, 16, v{src}") if r & 1 == 0 else V(f"v_and_b32 v{d}, {sMK}, v{src}"))
                if i: f.append(V(f"v_add_f32 v{G8A+r}, v{G8A+r}, v152"))
        for r in range(4): f.append(V(f"v_mov_b32 v{G8P+r}, v{G8A+r}"))
        f += [V(f"v_cmp_gt_u32 vcc, 32, v{vL}"), V(f"v_mov_b32 v152, {OOB}")]
        for r in range(4): f.append(V(f"v_permlane32_swap_b32 v{G8A+r}, v{G8P+r}"))
        f.append(V("v_cndmask_b32 v53, v152, v53, vcc"))
        for r in range(4):
            x, b, y = 152, 153, G8Y + r
            f += [V(f"v_add_f32 v{G8A+r}, v{G8A+r}, v{G8P+r}"),
                  V(f"v_lshlrev_b32 v{x}, 16, v{G8X+(r>>1)}") if r & 1 == 0 else V(f"v_and_b32 v{x}, {sMK}, v{G8X+(r>>1)}"),
                  V(f"v_lshlrev_b32 v{b}, 16, v{G8B+(r>>1)}") if r & 1 == 0 else V(f"v_and_b32 v{b}, {sMK}, v{G8B+(r>>1)}"),
                  V(f"v_lshlrev_b32 v{y}, s79, v{y}"), V(f"v_and_b32 v{y}, {sMK}, v{y}"),
                  V(f"v_add_f32 v{b}, v{b}, v{x}"), V(f"v_fma_f32 v{x}, v{x}, v{G8S}, v{G8S+1}"),
                  V(f"v_fmac_f32 v{G8A+r}, v{x}, v{y}"), V(f"v_fma_f32 v{G8A+r}, v{G8A+r}, {sIA}, v{b}")]
        f += [V(f"v_cvt_pk_bf16_f32 v{G8A}, v{G8A}, v{G8A+1}"), V(f"v_cvt_pk_bf16_f32 v{G8A+1}, v{G8A+2}, v{G8A+3}"),
              V(f"v_and_b32 v55, 3, v{vL}"), V("v_lshlrev_b32 v55, 2, v55")]
        f += [HOLD(56)] + g.flag(sFL2, "PS2")
        f += [VM(f"buffer_store_dwordx2 {v2(G8A)}, v53, {OUT}, s75 offen")]
        run_steps(e, steps, f)
        pi, pc = g.poll(f"buffer_load_dword v42, v55, {WS}, s76 offen offset:16 sc1", [42], "PL")
        g.stamp(e, 'own')
        e.item(pi); e.item(pc); g.stamp(e, 'poll')
        for k in range(4): e.items(g.pload(4 + k, 128 + 8 * k, f"LL{k}"))
        for k in range(4): e.wait(f"LL{k}"); e.items(g.padd(128 + 8 * k, OWN, 160))
        for nt in range(4):
            o = OWN + 4 * nt
            for r in range(4): e.A(f"v_mul_f32 v{o+r}, {sIA}, v{o+r}")
            e.A(f"v_cvt_pk_bf16_f32 v{o}, v{o}, v{o+1}"); e.A(f"v_cvt_pk_bf16_f32 v{o+1}, v{o+2}, v{o+3}")
            e.A(f"s_add_u32 {t1s}, {sXO}, {nt*18432}")
            e.vmop(f"buffer_store_dwordx2 {v2(o)}, v1, {OUT}, {t1s} offen")
        g.stamp(e, 'end'); g.stamp_out(e)
        e.A(f"s_or_b32 {t1s}, {sT}, {sJ}"); e.A(f"s_or_b32 {t1s}, {t1s}, {sW}"); e.A(f"s_cmp_lg_u32 {t1s}, 0"); e.A("s_cbranch_scc1 L_end")
        e.vmop(f"buffer_store_dword v50, v{vF0}, {WS}, 0 offen sc1")

    def build(g):
        e0 = Em(); g.prologue(e0); g.unitA1(e0); g.stamp(e0, 'A1')
        e0.A(f"s_cmp_eq_u32 {sW}, 0"); e0.A("s_cbranch_scc1 L_r0")
        e0.A(f"s_cmp_lg_u32 {sHC}, 0"); e0.A("s_cbranch_scc1 L_r2")
        r = [e0.fork() for _ in range(3)]
        r[0].A("L_r0:"); g.unitA2(r[0], 0); g.stamp(r[0], 'A2'); g.unitA3(r[0]); g.stamp(r[0], 'A3'); g.unitB1(r[0], 0)
        g.unitA2(r[1], 1); g.stamp(r[1], 'A2'); g.unitConv(r[1]); g.stamp(r[1], 'A3'); g.unitB1(r[1], 1); r[1].A("s_branch L_m")
        r[2].A("L_r2:"); g.unitA2(r[2], 2); g.stamp(r[2], 'A2'); g.unitIdle(r[2]); g.stamp(r[2], 'A3'); g.unitB1(r[2], 2); r[2].A("s_branch L_m")
        m = Em.merge(r); m.A("L_m:"); g.stamp(m, 'B1'); g.unitB2(m)
        errs = []
        for i in range(3): errs += check(e0.L + r[i].L + m.L, f"role{i}")
        errs = sorted(set(errs))
        for x in errs: print("HAZARD", x, file=sys.stderr)
        body = e0.L + r[1].L + r[2].L + r[0].L + m.L + ["L_end:", "s_endpgm"] + g.ool + ["L_codeend:"]
        hdr = ["; @launch grid=(256,1,1) block=(256,1,1) lds=163840", '.amdgcn_target "amdgcn-amd-amdhsa--gfx950"', ".text", f".globl {NAME}", ".p2align 8", f".type {NAME},@function", f"{NAME}:"]
        ftr = ['.section .rodata,"a"', ".p2align 6", f".amdhsa_kernel {NAME}", "  .amdhsa_next_free_vgpr 512", "  .amdhsa_next_free_sgpr 102", "  .amdhsa_accum_offset 256",
               "  .amdhsa_group_segment_fixed_size 0", "  .amdhsa_kernarg_size 112", "  .amdhsa_user_sgpr_count 2", "  .amdhsa_user_sgpr_kernarg_segment_ptr 1",
               "  .amdhsa_system_sgpr_workgroup_id_x 1", ".end_amdhsa_kernel"]
        return "\n".join(hdr + body + ftr) + "\n", errs

if __name__ == "__main__":
    out = sys.argv[1]
    opts = eval("dict(" + (sys.argv[2] if len(sys.argv) > 2 else "") + ")")
    txt, errs = G(**opts).build()
    open(out, "w").write(txt)
    print(len(txt), "bytes", txt.count("\n"), "lines", len(errs), "hazards")
```

```python
import re, copy
BIG = 1 << 20

class Em:
    def __init__(s):
        s.L = []; s.vm = BIG; s.vmd = BIG; s.lg = BIG; s.lgd = BIG; s.tv = {}; s.tl = {}; s.nbar = 0
    def fork(s):
        n = Em(); n.vm, n.vmd, n.lg, n.lgd = s.vm, s.vmd, s.lg, s.lgd
        n.tv = dict(s.tv); n.tl = dict(s.tl); n.nbar = s.nbar
        return n
    @staticmethod
    def merge(paths):
        n = Em(); assert len({p.nbar for p in paths}) == 1, [p.nbar for p in paths]
        n.nbar = paths[0].nbar
        def mg(get):
            out = {}
            keys = set()
            for p in paths: keys |= set(get(p)[0].keys())
            for k in keys:
                y = None
                for p in paths:
                    t, cur, done = get(p)
                    if k in t and t[k] > done:
                        v = cur - t[k]; y = v if y is None else min(y, v)
                out[k] = 0 if y is None else 2 * BIG - y
            return out
        n.tv = mg(lambda p: (p.tv, p.vm, p.vmd)); n.tl = mg(lambda p: (p.tl, p.lg, p.lgd))
        n.vm = n.lg = 2 * BIG; n.vmd = n.lgd = 1
        return n
    def A(s, t): s.L.append(t)
    def vmop(s, t, tag=None):
        s.L.append(t); s.vm += 1
        if tag: s.tv[tag] = s.vm
    def dsop(s, t, tag=None):
        s.L.append(t); s.lg += 1
        if tag: s.tl[tag] = s.lg
    def wait(s, vt=None, lt=None):
        parts = []
        if vt is not None:
            vts = vt if isinstance(vt, (list, tuple)) else [vt]
            x = max((s.vm if t == 'ALL' else s.tv[t]) for t in vts)
            if x > s.vmd:
                n = min(63, s.vm - x); parts.append(f"vmcnt({n})"); s.vmd = s.vm - n
        if lt is not None:
            lts = lt if isinstance(lt, (list, tuple)) else [lt]
            x = max((s.lg if t == 'ALL' else s.tl[t]) for t in lts)
            if x > s.lgd:
                n = min(15, s.lg - x); parts.append(f"lgkmcnt({n})"); s.lgd = s.lg - n
        if parts: s.L.append("s_waitcnt " + " ".join(parts)); return True
        return False
    def bar(s): s.L.append("s_barrier"); s.nbar += 1
    def item(s, it):
        k = it[0]
        if k == 'v' or k == 's': s.A(it[1])
        elif k == 'vm': s.vmop(it[1], it[2] if len(it) > 2 else None)
        elif k == 'ds': s.dsop(it[1], it[2] if len(it) > 2 else None)
        elif k == 'w': s.wait(it[1], it[2] if len(it) > 2 else None)
        elif k == 'bar': s.bar()
        elif k == 'fn': it[1](s)
        elif k == 'grp' or k == 'sq':
            for x in it[1]: s.item(x)
        elif k == 'hold' or k == 'by': pass
        else: raise ValueError(it)
    def items(s, its):
        for it in its: s.item(it)

TRANS = ('v_exp_', 'v_rcp_', 'v_rsq_', 'v_sqrt_', 'v_log_')
def V(t): return ('v', t, 8 if t.startswith(TRANS) else 4)
def S(t): return ('s', t)
def VM(t, tag=None): return ('vm', t, tag)
def DS(t, tag=None): return ('ds', t, tag)
def W(vt=None, lt=None): return ('w', vt, lt)
def HOLD(gap): return ('hold', gap)

class Step:
    def __init__(s, mf):
        s.mf = mf; s.top = []; s.gaps = [[] for _ in mf]
    def heavy(s, i): return sum(1 for x in s.gaps[i] if x[0] in ('vm', 'ds', 'grp'))
    def place(s, its, lo=0, hi=None):
        hi = len(s.mf) if hi is None else hi
        cnt = {i: s.heavy(i) for i in range(lo, hi)}
        pos = []
        for _ in its:
            i = min(cnt, key=lambda i: (cnt[i], any(x[0] == 'vm' for x in s.gaps[i]), -i)); cnt[i] += 1; pos.append(i)
        for it, i in zip(its, sorted(pos)): s.gaps[i].append(it)

def run_steps(e, steps, fill, b_full=8, b_empty=12, b_dma=8, flush=True):
    g = 0; carry = 0
    for st in steps:
        e.items(st.top)
        for i, m in enumerate(st.mf):
            e.A(m)
            its = st.gaps[i]
            e.items(its)
            hv = st.heavy(i)
            while fill and fill[0][0] != 'v':
                h = fill[0]
                if h[0] == 'hold':
                    if g < h[1]: break
                    fill.pop(0); continue
                if h[0] in ('vm', 'ds', 'grp', 'fn'):
                    if hv >= 1 and not getattr(st, 'force', False) and carry < 2:
                        carry += 1; break
                    hv += 1; carry = 0
                e.item(fill.pop(0))
            bud = b_empty if not its and hv == 0 else (b_dma if any(x[0] == 'vm' for x in its) else b_full)
            if hv >= 2: bud = min(bud, 4)
            while fill and fill[0][0] == 'v' and fill[0][2] <= bud:
                bud -= fill[0][2]; e.item(fill.pop(0))
            g += 1
    if flush:
        while fill: e.item(fill.pop(0))

RX = re.compile(r'(-?)\b([vas])(\d+)\b|\b([vas])\[(\d+):(\d+)\]|\b(vcc|m0|exec)\b')
def regs(op):
    out = set()
    for m in RX.finditer(op):
        if m.group(2): out.add((m.group(2), int(m.group(3))))
        elif m.group(4):
            for r in range(int(m.group(5)), int(m.group(6)) + 1): out.add((m.group(4), r))
        else: out.add(('s', m.group(7)))
    return out
def parse(line):
    line = line.split(';')[0].strip()
    if not line or line.endswith(':') or line.startswith('.'): return None
    p = line.split(None, 1); op = p[0]
    ops = [x.strip() for x in re.split(r',\s*(?![^\[]*\])', p[1])] if len(p) > 1 else []
    d = dict(op=op, w=set(), r=set(), cls='s', txt=line)
    if op.startswith('v_mfma'):
        d.update(cls='mfma', w=regs(ops[0]), ab=regs(ops[1]) | regs(ops[2]), c=regs(ops[3])); d['r'] = d['ab'] | d['c']
    elif op.startswith('v_'):
        d['cls'] = 'valu'; d['w'] = regs(ops[0])
        for o in ops[1:]: d['r'] |= regs(o)
        if op.startswith(('v_permlane',)): d['w'] |= regs(ops[1]); d['r'] |= regs(ops[0])
        if op.startswith(('v_dot2c', 'v_fmac', 'v_mac')): d['r'] |= d['w']
        if op.startswith('v_cndmask') and len(ops) == 3: d['r'].add(('s', 'vcc'))
    elif op.startswith('buffer_') or op.startswith('global_'):
        d['cls'] = 'vmem'
        lds = re.search(r'\blds\b', line) is not None
        d['lds'] = lds
        if 'store' in op or lds:
            for o in ops: d['r'] |= regs(o)
            if 'store' in op: d['data'] = regs(ops[0])
            if lds: d['r'].add(('s', 'm0'))
        else:
            d['w'] = regs(ops[0])
            for o in ops[1:]: d['r'] |= regs(o)
    elif op.startswith('ds_'):
        d['cls'] = 'ds'
        if 'read' in op:
            d['w'] = regs(ops[0])
            for o in ops[1:]: d['r'] |= regs(o)
        else:
            for o in ops: d['r'] |= regs(o)
    elif op.startswith('s_'):
        if op.startswith(('s_cmp', 's_waitcnt', 's_nop', 's_barrier', 's_cbranch', 's_branch', 's_endpgm', 's_setprio', 's_sleep')):
            for o in ops: d['r'] |= regs(o)
        else:
            d['w'] = regs(ops[0]) if ops else set()
            for o in ops[1:]: d['r'] |= regs(o)
    return d
def isv(rs): return {r for r in rs if r[0] in 'va'}
def iss(rs): return {r for r in rs if r[0] == 's'}
def check(lines, name=""):
    ins = [x for x in (parse(l) for l in lines) if x]
    errs = []
    for i, c in enumerate(ins):
        dist = 0
        for k in range(i - 1, max(-1, i - 12), -1):
            p = ins[k]; need = 0; why = ''
            def rq(n, y):
                nonlocal need, why
                if n > need: need, why = n, y
            if p['cls'] == 'valu':
                dl = p['op'].startswith('v_dot')
                if c['cls'] == 'mfma' and isv(p['w']) & c['r']: rq(3 if dl else 2, 'valu->mfma')
                if dl and c['cls'] != 's' and isv(p['w']) & (c['r'] | c['w']):
                    if not (c['op'] == p['op'] and p['w'] == c['w']): rq(3, 'dot->other')
                if p['op'].startswith(TRANS) and c['cls'] == 'valu' and p['w'] & c['r']: rq(1, 'trans')
                if c['cls'] == 'valu' and c['op'].startswith(('v_readfirstlane', 'v_readlane')) and isv(p['w']) & c['r']: rq(1, 'rfl')
                if c['cls'] == 'valu' and iss(p['w']) & c['r']: rq(2, 'vsgpr->valu')
                if c['cls'] == 'vmem' and iss(p['w']) & c['r']: rq(5, 'vsgpr->vmem')
                if c['cls'] == 'valu' and ('dpp' in c['op'] or 'quad_perm' in c['txt'] or c['op'].startswith('v_permlane')) and isv(p['w']) & c['r']: rq(2, 'valu->dpp')
            if p['cls'] == 'mfma':
                if c['cls'] == 'mfma':
                    if p['w'] & c['ab']: rq(8, 'mfma->ab')
                    if p['w'] & c['c'] and p['w'] != c['c']: rq(6, 'mfma->c overlap')
                    if p['w'] & c['w'] and p['w'] != c['c']: rq(6, 'mfma waw')
                elif p['w'] & (c['r'] | c['w']): rq(8, 'mfma->rd/wr')
                if c['cls'] == 'valu' and p['c'] & c['w']: rq(3, 'srcC war')
            if p['cls'] == 'vmem' and 'data' in p and len(p['data']) > 2 and p['data'] & c['w']: rq(2, 'store war')
            if p['cls'] == 's' and ('s', 'm0') in p['w'] and c['cls'] == 'vmem' and c.get('lds'): rq(1, 'm0')
            if need > dist: errs.append(f"{name}: {why} need {need} have {dist}: [{p['txt']}] -> [{c['txt']}]")
            dist += (int(p['txt'].split()[1]) + 1) if p['op'] == 's_nop' else 1
    return errs

def BY(gap): return ('by', gap)
def icost(it):
    k = it[0]
    if k == 'v': return it[2]
    if k in ('hold', 'by'): return 0
    if k in ('grp', 'sq'): return sum(icost(x) for x in it[1])
    if k == 'fn': return 12
    return 4
def run2(e, steps, fill, b_full=8, b_empty=8, b_dma=4, flush=True, tend=None):
    gaps = [(st.t0 + i / len(st.mf)) for st in steps for i in range(len(st.mf))]
    import bisect
    g = 0; carry = 0; credit = 0.0
    for st in steps:
        e.items(st.top)
        for i, m in enumerate(st.mf):
            now = gaps[g]
            e.A(m)
            its = st.gaps[i]
            e.items(its)
            hv = st.heavy(i)
            cum = 0; rate = 0; force = -1
            for k, x in enumerate(fill):
                if x[0] == 'by':
                    left = bisect.bisect_left(gaps, x[1] - 1e-9) - g
                    if x[1] > gaps[-1] + 1.0 / len(steps[-1].mf) + 1e-9: left += int((x[1] - gaps[-1]) * 16)
                    if left <= 1: force = k
                    else: rate = max(rate, cum / left)
                elif x[0] == 'hold' and x[1] > now + 1e-9 and force < 0: break
                cum += icost(x)
            if force >= 0:
                for x in fill[:force + 1]:
                    if x[0] == 'hold': assert x[1] <= now + 1e-9, (x, now)
                    elif x[0] != 'by': e.item(x)
                del fill[:force + 1]; credit = 0
            credit += rate
            bud = b_empty if not its else (b_dma if any(x[0] == 'vm' for x in its) else b_full - 4 * (len(its) - 1))
            bud = getattr(st, 'bud', 0) + bud
            while fill:
                h = fill[0]
                if h[0] == 'hold':
                    if now < h[1] - 1e-9: break
                    fill.pop(0); continue
                if h[0] == 'by': fill.pop(0); continue
                c = icost(h)
                if h[0] in ('vm', 'ds', 'grp', 'fn'):
                    if hv >= 1 and carry < 2 and credit < c:
                        carry += 1; break
                    hv += 1; carry = 0
                elif h[0] == 'w': pass
                elif not (c <= bud or credit >= c / 2 or (h[0] == 'sq' and bud >= 4)): break
                e.item(fill.pop(0)); bud -= c; credit = max(credit - c, -4)
            g += 1
    if flush:
        while fill:
            x = fill.pop(0)
            if x[0] not in ('hold', 'by'): e.item(x)

class Th:
    def __init__(s, name): s.name = name; s.q = []
    def add(s, t, its, dl=1e9):
        if its: s.q.append([t, dl, list(its)])
    def addsplit(s, t, its, n, dl=1e9):
        for i in range(0, len(its), n): s.add(t, its[i:i + n], dl)
    def fix(s):
        d = 1e9
        for c in reversed(s.q): d = min(d, c[1]); c[1] = d
        for c in s.q: assert c[0] < c[1], (s.name, c[0], c[1])
HEAVY = ('vm', 'ds', 'grp', 'fn')
def run3(e, steps, ths, base=10, log=None):
    import bisect
    G = [(st, i) for st in steps for i in range(len(st.mf))]
    tm = [st.t0 + i / len(st.mf) for st, i in G]
    fx = [sum(icost(x) for x in st.gaps[i]) for st, i in G]
    cf = [0]
    for x in fx: cf.append(cf[-1] + x)
    for t in ths: t.fix()
    cur = []; acc = 0.0; carry = 0
    def cost(its): return sum(icost(x) for x in its)
    for g, (st, i) in enumerate(G):
        now = tm[g]
        if i == 0: e.items(st.top)
        e.A(st.mf[i]); e.items(st.gaps[i]); hv = st.heavy(i)
        nxt = tm[g + 1] if g + 1 < len(G) else tm[g] + 1.0 / len(st.mf)
        ch = sorted((c[1], cost(c[2])) for t in ths for c in t.q if c[1] <= tm[-1] + 0.2)
        lvl = getattr(st, 'base', base); w = cost(cur)
        for d, c in ch:
            w += c; k = max(g + 1, bisect.bisect_left(tm, d - 1e-9))
            lvl = max(lvl, (w + cf[k] - cf[g]) / (k - g))
        acc = min(acc, 2.0) + lvl - fx[g]
        while True:
            due = [t for t in ths if t.q and t.q[0][1] <= nxt + 1e-9]
            if not cur:
                rd = [t for t in ths if t.q and t.q[0][0] <= now + 1e-9]
                if not rd:
                    assert not due, [(t.name, t.q[0][:2]) for t in due]
                    break
                t = min(rd, key=lambda t: (t.q[0][1], t.q[0][0]))
                curdl = t.q[0][1]
                if log is not None: log.append((round(now, 2), t.name))
                cur = t.q.pop(0)[2]
            h = cur[0]; c = icost(h)
            force = bool(due) or curdl <= nxt + 1e-9
            if not force:
                if h[0] in HEAVY:
                    if hv >= 1 and carry < 2: carry += 1; break
                    if acc < 0: break
                elif h[0] != 'w' and acc < c / 2: break
            if h[0] in HEAVY: hv += 1; carry = 0
            e.item(cur.pop(0)); acc -= c
        acc = max(acc, -12)
    e.items(cur)
```

```python
import sys, struct, math, re
from fw import *
NAME = "parallel_sum__ssm_conv_h3__dense_activation_gelu__prompt_kernel"
def f2u(x): return struct.unpack("<I", struct.pack("<f", x))[0]
KC = 2 * math.sqrt(2 / math.pi) * math.log2(math.e)
AC = (KC * 0.044715) ** (1 / 3); BETA = KC / AC
KF0, KV0, Y0, YP, P0 = 1024, 0x100000, 0x400000, 0x240000, 0xe00000
TAGC = 0x9E3779B9
OOB = 0x80000000
RING = 73728
KS, VS, G8K, G8V, BIASL, STATS, H7, H8 = 139264, 148480, 156672, 158720, 159744, 162048, 155648, 16384
CB0, CBS, FP, GB = 32768, 12896, 4160, 8320
sW, sT, sJ, sM, sTAG = "s3", "s4", "s5", "s6", "s7"
X, K_, V_, W1, W2, WS, OUT, SSM, B1, B2, SH = [f"s[{a}:{a+3}]" for a in range(8, 52, 4)]
sFm, sFo, sT3, sPB = "s40", "s41", "s42", "s43"
sC8, sSO, sWA, sWA2, sG2, sLSB = "s55", "s57", "s58", "s59", "s60", "s61"
sNB, sA, sMK, sIA = "s62", "s63", "s64", "s65"
sC, sC0, sPS, sPL = "s66", "s67", "s68", "s69"
t0s, t1s, t2s, t3s, t4s = "s70", "s71", "s72", "s73", "s74"
sXW, sXO, sG8P, sYB = "s75", "s76", "s77", "s78"
sSEL = "s79"
sCNT = "s82"
GOF = ["s83", "s84", "s85"]
sT1, sT2 = "s86", "s87"
vW1, vXH, vXH2, vHW, vBA, vW2, vTR, vL, vL16, vQ8, vTA, vF0 = 0, 4, 5, 6, 7, 8, 12, 15, 16, 17, 18, 19
GT, BIAS, ST = 20, 24, 32
vCF, vCG, vTB = 42, 46, 47
ACC = (48, 64, 80); HH = 96; WB = 192
CA, POOL, C8A, v8F, v8G = 96, 128, 80, 88, 92
SUM = 80
XR, G8X, B2R, G8B, vO, DUM = 176, 184, 186, 188, 190, 191
XN, YR, G8Y, vY, vY8, vO8 = 128, 144, 160, 172, 173, 174
KR, VR, K8, V8, KW, KU, KO, KA = 120, 132, 140, 144, 146, 150, 162, 170
def qreg(i):
    r = i * 4
    return f"a[{r}:{r+3}]" if r < 256 else f"v[{224 + r - 256}:{224 + r - 256 + 3}]"
def v4(r): return f"v[{r}:{r+3}]"
def v2(r): return f"v[{r}:{r+1}]"
MF = "v_mfma_f32_16x16x32_bf16"
def ext(d, s, hi): return V(f"v_and_b32 v{d}, {sMK}, v{s}") if hi else V(f"v_lshlrev_b32 v{d}, 16, v{s}")
def SQ(*x): return ('sq', [S(t) for t in x])
def tagit(r, i): return V(f"v_bfi_b32 v{r}, {sLSB}, v{vTB if i & 1 else vTA}, v{r}")

class G:
    def __init__(g, **o):
        g.o = dict(dly=2, xa0=5, tr4=4, thw=36, cps=7.5, cps8=3.5, c0=46, npool=12, rate=((0, 4.5), (37, 5)), pause=((34.5, 37),), minlead=1.6,
                   npro=4, nx=9, m0=36, mpr=16, nb1=2, tb1=0, tkt=0, kvpro=1, tkv=0.5, kvr=1, kvby=9.0, tflag=14, tpoll=27, tchk=33,
                   tw1=(0.5, 4, 8, 12, 16, 20, 24), tw2=(6, 10, 14, 18, 22, 26), tss=29, tfg=(41, 41.6, 46, 46.5, 47.5, 48), txl=30, tbase=54.2,
                   lag=6.5, ladd=4.2, lag8=6.5, tyl=77.0, tya=80.5, l6=77.6, l7=81, spin=4000, base=10, ts=False); g.o.update(o)
        g.ool = []; g.lab = 0
        o = g.o
        seq = list(range(81)); seq.remove(44); seq.insert(44 + o['dly'], 44); g.seq = seq
        g.its = []
        for c in seq:
            g.its.append([(0,) + divmod(i, 18) if i < 162 else (1,) + divmod(i - 162, 18) for i in range(4 * c, 4 * c + 4)])
        g.plan = g.conv_plan(); g.cstep = [o['c0'] + int(i / o['cps8'] if i < 24 else 24 / o['cps8'] + (i - 24) / o['cps']) for i in range(len(g.plan))]
        g.cend = g.cstep[-1] + 1; g.c8end = g.cstep[23] + 1
        g.tend = {}; g.tbeg = {}
        for p, its in enumerate(g.its):
            for kk, (ph, u, ks) in enumerate(its):
                g.tend[ph, u] = p + (kk + 1) / 4
                g.tbeg.setdefault((ph, u), p + kk / 4)
        g.sched()
    def label(g, p="L"):
        g.lab += 1; return f"{p}{g.lab}"
    def aset(g, ph, u): return ACC[u % 3] if ph == 0 else ACC[u & 1]

    def sched(g):
        o = g.o; pu = 44 + o['dly']
        free = {RING + 16384 * i: (-1 if i < 4 else o['tr4']) for i in range(5)}
        freex = {16384 * i: o['xa0'] for i in range(4)}
        xb = {0: 41, 16384: pu, 32768: g.cend, 49152: g.cend}
        g.loc = []; g.stream = []
        for p in range(o['npro']): g.loc.append(RING + 16384 * p); free[g.loc[p]] = p
        xd = sorted(g.xgroups(), key=lambda x: x[0])
        def rate(t): return [r for a, r in o['rate'] if a <= t][-1]
        def skip(t):
            for a, b in o['pause']:
                if a <= t < b: t = b + 0.1
            return t
        t = 0.1; p = o['npro']; g.iss = {}
        while p < 81 or xd:
            if p < 81:
                cand = [(f, 1, a) for a, f in free.items()]
                if p <= o['thw']: cand += [(f, 0, a) for a, f in freex.items() if o.get('xa', 1)]
                else: cand += [(max(f, xb[a]), 0, a) for a, f in freex.items() if o.get('xb', 1)]
                now = [c for c in cand if c[0] + 0.1 <= t]
                f, k, a = min(now, key=lambda c: (c[1], c[0], c[2])) if now else min(cand)
                st = max(t, f + 0.1, p - o.get('maxlead', 99))
            if xd and (p > 80 or xd[0][0] <= st):
                rel, sa, vm = xd.pop(0); t = max(t, rel)
            else:
                t = st; g.loc.append(a); (free if k else freex)[a] = p
                sa, vm = g.dma(p); p += 1
            tt = []
            for x in vm:
                t = skip(t); tt.append(t); t += (4 if x[0] == 'grp' else 1) / rate(t)
            g.stream.append((sa, vm, tt))
            tag = vm[-1][2] if vm[-1][0] == 'vm' else 'D40'
            g.iss[tag] = tt[-1]
        for p in range(o['npro'], 81): assert g.iss[f"D{p}"] < p - 1 - o['minlead'], (p, g.iss[f"D{p}"])
    def xgroups(g):
        o = g.o; x = []
        if not o['kvpro']:
            for i, (sa, vm) in enumerate(g.kvdma()): x.append((o['tkv'] + 0.01 * i, sa, vm))
        for i, c in enumerate((2, 0, 1)):
            ch = [f"s_add_u32 {sSO}, {sC8 if c == 2 else sC0}, %s"] + ([f"s_add_u32 {sSO}, {sSO}, 4096"] if c == 1 else [])
            x.append((o['tfg'][2 * i], [S(f"s_add_u32 m0, {sFm}, {CB0 + CBS*c}"), SQ(ch[0] % sFo, *ch[1:])],
                      [VM(f"buffer_load_dwordx4 v{vL16}, {SSM}, {sSO} offen offset:{1024*k} lds", f"F{c}") for k in range(2)]))
            x.append((o['tfg'][2 * i + 1], [SQ(f"s_lshr_b32 {sT1}, {sM}, 2", f"s_add_u32 m0, {sT1}, {CB0 + CBS*c + GB}", ch[0] % sT1, f"s_add_u32 {sSO}, {sSO}, {KV0 + (4096 if c == 1 else 0)}")],
                      [VM(f"buffer_load_dwordx4 v{vL16}, {WS}, {sSO} offen sc1 lds", f"G{c}")]))
        return x
    def kvdma(g):
        return [([SQ(f"s_lshr_b32 {sT1}, {sM}, 1", f"s_add_u32 m0, {sT1}, {KS+1024}", f"s_movk_i32 {sSO}, 8192")],
                 [VM(f"buffer_load_dwordx4 v40, {K_}, 0 offen lds", "KVD"), VM(f"buffer_load_dwordx4 v40, {K_}, {sSO} offen offset:1024 lds", "KVD")]),
                ([SQ(f"s_lshr_b32 {sT1}, {sM}, 1", f"s_add_u32 m0, {sT1}, {VS}", f"s_movk_i32 {sSO}, 8192")],
                 [VM(f"buffer_load_dwordx4 v40, {V_}, 0 offen lds", "KVD"), VM(f"buffer_load_dwordx4 v40, {V_}, {sSO} offen offset:1024 lds", "KVD")]),
                ([SQ(f"s_cmp_eq_u32 {sW}, 3", "s_cselect_b32 s12, s16, s12", "s_cselect_b32 s13, s17, s13", f"s_lshr_b32 {sT1}, {sM}, 2", f"s_add_u32 {sT1}, {sT1}, {G8K-1024}",
                     f"s_cmp_eq_u32 {sW}, 0", f"s_cselect_b32 m0, {KS}, {sT1}", "s_nop 0")],
                 [VM(f"buffer_load_dwordx4 v41, {K_}, 0 offen lds", "KVD")])]
    def shld(g):
        return [SQ(f"s_lshl_b32 {t3s}, {sJ}, 9", f"s_lshl_b32 {t4s}, {sW}, 7", f"s_add_u32 {t3s}, {t3s}, {t4s}", f"s_add_u32 {t4s}, {t4s}, 4096"),
                VM(f"buffer_load_dwordx2 v[42:43], v35, {SH}, {t3s} offen"), VM(f"buffer_load_dwordx2 v[44:45], v35, {SH}, {t4s} offen"),
                VM(f"buffer_load_dword v46, v46, {WS}, 0 offen sc1", "SH")]
    def gof(g, u):
        r = GOF[u % 3]
        if u == 0: return [S(f"s_add_u32 {r}, {sG2}, 1024")]
        return [S(f"s_add_u32 {r}, {sJ}, {u}"), S(f"s_and_b32 {r}, {r}, 7"), S(f"s_lshl_b32 {r}, {r}, 7"), S(f"s_add_u32 {r}, {r}, {sG2}")]
    def dma(g, p):
        its = g.its[p]; ph, u, ks = its[0]; tag = f"D{p}"
        m0 = S(f"s_add_u32 m0, {sM}, {g.loc[p]}")
        def ld(vb, srd): return [f"buffer_load_dwordx4 v{vb+m}, {srd}, {sSO} offen offset:{1024*m} lds" for m in range(4)]
        if its[0][0] != its[3][0]:
            def f(e):
                la, lb = g.label("Sa"), g.label("Sb")
                e.items(g.gof(0)); e.A(f"s_cmp_lt_u32 {sW}, 2"); e.A(f"s_cbranch_scc1 {la}")
                e.A(f"s_sub_u32 {sSO}, {GOF[0]}, {2*36864}")
                for x in ld(vW2, W2): e.A(x)
                e.A(f"s_branch {lb}"); e.A(f"{la}:"); e.A(f"s_add_u32 {sSO}, {sWA}, {8*128 + 16*294912}")
                for x in ld(vW1, W1): e.vmop(x, tag)
                e.A(f"{lb}:")
            return ([m0], [('grp', [('fn', f)])])
        if ph == 0:
            so = [S(f"s_add_u32 {sSO}, {sWA2 if ks == 16 else sWA}, {u*128 + ks*294912}")]
            return ([m0, ('sq', so)], [VM(x, tag) for x in ld(vW1, W1)])
        if ks == 16:
            so = g.gof(u + 1) + [S(f"s_add_u32 {sT1}, {GOF[u%3]}, {16*36864}"), S(f"s_sub_u32 {sSO}, {GOF[(u+1)%3]}, {2*36864}"),
                                 S(f"s_cmp_lt_u32 {sW}, 2"), S(f"s_cselect_b32 {sSO}, {sT1}, {sSO}")]
        else:
            so = (g.gof(u) if ks == 0 else []) + [S(f"s_add_u32 {sSO}, {GOF[u%3]}, {ks*36864}")]
        return ([m0, ('sq', so)], [VM(x, tag) for x in ld(vW2, W2)])
    def tr(g, p):
        it = []
        for kk in range(4):
            r = WB + (p & 1) * 16 + kk * 4
            for h in range(2):
                a = g.loc[p] + 4096 * kk + 2048 * h
                it.append(DS(f"ds_read_b64_tr_b16 {v2(r+2*h)}, v{vTR + (a >> 16)} offset:{a & 0xffff}", f"T{p}"))
        return it
    def fragread(g, ks, tag, hb=False):
        it = []
        for nt in range(4):
            f = ks * 4 + nt
            a, off = (vXH, f * 1024) if f < 64 else (vXH2, (f - 64) * 1024)
            if hb: a, off = (vXH2, (f - 56) * 1024) if ks < 16 else (vXH, H8 + (f - 64) * 1024)
            it.append(DS(f"ds_read_b128 {qreg(f)}, v{a} offset:{off}", tag))
        return it
    def step(g, p, cm=()):
        mf = []
        for kk, (ph, u, ks) in enumerate(g.its[p]):
            for nt in range(4):
                d = v4(g.aset(ph, u) + 4 * nt)
                c = d if ks else (v4(BIAS + 4 * (u & 1)) if ph == 0 else "0")
                mf.append(f"{MF} {d}, {v4(WB + (p&1)*16 + kk*4)}, {qreg(ks*4+nt)}, {c}")
        cpos = []
        if cm:
            out = []; n = len(cm); k = 0
            for i, m in enumerate(mf):
                out.append(m)
                while k < n and k + 0.5 < (i + 1) * n / 16: cpos.append(len(out)); out.append(cm[k]); k += 1
            mf = out; assert k == n
        st = Step(mf); st.t0 = p; st.cpos = cpos
        st.top.append(g.SS(f"s{p}"))
        st.lt = [f"T{p}"]; st.vt = [f"D{p+1}"] if p < 80 else []
        st.top.append(('fn', lambda e: e.wait(st.vt or None, st.lt)))
        if p < 80: st.top.append(('bar',))
        return st

    def gelu(g, s):
        q = []; acc = g.aset(0, s)
        if g.o.get('nogelu'): return q
        for p in range(8):
            a, b = acc + 2 * p, acc + 2 * p + 1; x, y = GT + 2 * (p & 1), GT + 1 + 2 * (p & 1)
            q += [V(f"v_fma_f32 v{x}, v{a}, -v{a}, {sNB}"), V(f"v_fma_f32 v{y}, v{b}, -v{b}, {sNB}"),
                  V(f"v_mul_f32 v{x}, v{x}, v{a}"), V(f"v_mul_f32 v{y}, v{y}, v{b}"),
                  V(f"v_exp_f32 v{x}, v{x}"), V(f"v_exp_f32 v{y}, v{y}"),
                  V(f"v_add_f32 v{x}, 1.0, v{x}"), V(f"v_add_f32 v{y}, 1.0, v{y}"),
                  V(f"v_rcp_f32 v{x}, v{x}"), V(f"v_rcp_f32 v{y}, v{y}"),
                  V(f"v_mul_f32 v{x}, v{x}, v{a}"), V(f"v_mul_f32 v{y}, v{y}, v{b}"),
                  V(f"v_cvt_pk_bf16_f32 v{HH+8*s+p}, v{x}, v{y}")]
        return q
    def hwrite(g, s, adr, off, tag):
        return [DS(f"ds_write_b64 v{adr}, {v2(HH+8*s+2*nt)} offset:{off + nt*1024}", tag) for nt in range(4)]
    def chk(g, loads, tag, pre, post):
        def flat(its):
            for x in its:
                if x[0] == 'sq': yield from flat(x[1])
                else: yield x[1]
        def f(e):
            ok, slow, loop = g.label("Pk"), g.label("Ps"), g.label("Pl")
            for x in post: e.A(x)
            e.A(f"s_cbranch_scc1 {slow}"); e.A(f"{ok}:")
            o = g.ool.append
            o(f"{slow}:"); o(f"s_movk_i32 {sCNT}, {g.o['spin']}"); o(f"{loop}:")
            for x in flat(loads): o(x)
            o("s_waitcnt vmcnt(0)")
            for x in pre + post: o(x)
            o(f"s_cbranch_scc0 {ok}")
            o(f"s_sub_u32 {sCNT}, {sCNT}, 1"); o(f"s_cmp_lg_u32 {sCNT}, 0"); o(f"s_cbranch_scc1 {loop}"); o(f"s_branch {ok}")
        return [W(tag)] + [V(x) for x in pre] + [('fn', f)]
    def mchk(g, loads, tag, rt, tmp=GT):
        pre = [f"v_xor_b32 v{tmp}, v{rt[0][0]}, v{rt[0][1]}"] + [f"v_bitop3_b32 v{tmp}, v{r}, v{tmp}, v{t} bitop3:0xde" for r, t in rt[1:]] + [f"v_and_b32 v{tmp}, {sLSB}, v{tmp}"]
        return g.chk(loads, tag, pre, [f"v_cmp_ne_u32 vcc, 0, v{tmp}", "s_cmp_lg_u64 vcc, 0"])
    def ab(g, r, n): return [(r + i, vTB if i & 1 else vTA) for i in range(n)]
    def stamp(g, e, nm):
        if not g.o['ts'] or nm not in g.o['ts']: return
        i = g.o['ts'].index(nm)
        if g.o.get('tsx'):
            e.A("s_memrealtime s[88:89]" if g.o.get('tsr') else "s_memtime s[88:89]")
            e.A("s_waitcnt lgkmcnt(0)"); e.A(f"s_mov_b32 s{90+i}, s88"); return
        if i > 0: e.A(f"s_mov_b32 s{90+i-1}, s88")
        e.A("s_memrealtime s[88:89]" if g.o.get('tsr') else "s_memtime s[88:89]")
    def SS(g, nm): return ('fn', lambda e: g.stamp(e, nm))
    def stamp_out(g, e):
        if not g.o['ts']: return
        n = len(g.o['ts']) - 1
        e.A("s_memrealtime s[80:81]"); e.A("s_waitcnt lgkmcnt(0)"); e.A(f"s_mov_b32 s{90+n}, s88")
        e.A("v_mov_b32 v60, 0")
        for i in range(n + 1): e.A(f"v_writelane_b32 v60, s{90+i}, {i}")
        e.A("v_writelane_b32 v60, s101, 14"); e.A("v_writelane_b32 v60, s80, 15")
        e.A(f"v_lshlrev_b32 v61, 2, v{vL}"); e.A(f"v_cmp_gt_u32 vcc, 16, v{vL}"); e.A(f"v_mov_b32 v62, {OOB}"); e.A("s_nop 0"); e.A("v_cndmask_b32 v61, v62, v61, vcc")
        e.A(f"s_lshl_b32 {t1s}, s2, 2"); e.A(f"s_add_u32 {t1s}, {t1s}, {sW}"); e.A(f"s_lshl_b32 {t1s}, {t1s}, 6"); e.A(f"s_add_u32 {t1s}, {t1s}, 0x3000000")
        e.vmop(f"buffer_store_dword v60, v61, {WS}, {t1s} offen")

    def prologue(g, e):
        A = e.A; o = g.o
        A("s_cmp_ge_u32 s2, 256"); A("s_cbranch_scc1 L_end")
        if g.o['ts']: A("s_memrealtime s[80:81]"); g.stamp(e, 'start')
        for srd, off in ((8, 0), (20, 56), (40, 64), (28, 104), (12, 8), (16, 16), (48, 24), (36, 32), (52, 40), (24, 72), (44, 80), (32, 88)):
            A(f"s_load_dwordx2 s[{srd}:{srd+1}], s[0:1], {off}")
        A(f"v_lshrrev_b32 v1, 6, v0"); A(f"v_and_b32 v{vL}, 63, v0"); A(f"v_readfirstlane_b32 {sW}, v1")
        A(f"s_and_b32 {t0s}, s2, 7"); A(f"s_lshr_b32 {t1s}, s2, 3")
        A(f"s_and_b32 {sT}, {t0s}, 1"); A(f"s_lshl_b32 {sT}, {sT}, 4"); A(f"s_lshr_b32 {t2s}, {t1s}, 1"); A(f"s_add_u32 {sT}, {sT}, {t2s}")
        A(f"s_and_b32 {sJ}, {t0s}, 6"); A(f"s_and_b32 {t2s}, {t1s}, 1"); A(f"s_add_u32 {sJ}, {sJ}, {t2s}")
        for srd, n in ((8, 2359296), (12, 2359296), (16, 2359296), (20, 5308416), (24, 5308416), (28, 0x10000000), (32, 2359296), (36, 2359296), (40, 9216), (44, 1152), (48, 4608)):
            A(f"s_mov_b32 s{srd+2}, {n}"); A(f"s_mov_b32 s{srd+3}, 0x20000")
        A(f"v_lshrrev_b32 v35, 3, v{vL}"); A("v_mul_u32_u24 v34, 1152, v35"); A(f"v_and_b32 v21, 7, v{vL}"); A("v_lshl_add_u32 v34, v21, 4, v34")
        A(f"s_lshl_b32 {sXW}, {sT}, 2"); A(f"s_add_u32 {sXW}, {sXW}, {sW}"); A(f"s_and_b32 {t3s}, {sXW}, 63"); A(f"s_mul_i32 {sXW}, {sXW}, 18432"); A(f"s_add_u32 {sXO}, {sXW}, 9216")
        A(f"v_mul_u32_u24 v36, 57, v{vL}"); A("v_lshrrev_b32 v36, 9, v36"); A("v_mul_u32_u24 v37, 9, v36"); A(f"v_sub_u32 v37, v{vL}, v37"); A("v_mul_u32_u24 v38, 9216, v37")
        A(f"v_min_u32 v36, {o['nb1']-1}, v36"); A("v_lshl_add_u32 v36, v36, 7, v38")
        A(f"s_mul_i32 {sWA}, {sJ}, 1152"); A(f"s_mul_i32 {sT2}, {t3s}, {9*9216}"); A(f"s_add_u32 {sT2}, {sT2}, {sWA}")
        A(f"v_min_u32 v39, 35, v{vL}"); A("v_lshlrev_b32 v39, 3, v39"); A(f"s_mul_i32 {t4s}, {sW}, 288"); A(f"s_add_u32 {t4s}, {t4s}, {sWA}")
        for x in (f"s_lshl_b32 {sC0}, {sJ}, 5", f"s_add_u32 {sC0}, {sC0}, {sT}", f"s_lshl_b32 {sC0}, {sC0}, 13",
                  f"s_lshr_b32 {t0s}, {sT}, 2", f"s_lshl_b32 {t1s}, {sJ}, 3", f"s_add_u32 {t1s}, {t1s}, {t0s}", f"s_add_u32 {t1s}, {t1s}, 512", f"s_lshl_b32 {sC8}, {t1s}, 12",
                  f"s_lshl_b32 {sM}, {sW}, 12", f"s_add_u32 {sC}, {sC0}, {sM}", f"s_cmp_lt_u32 {sW}, 2", f"s_cselect_b32 {sC}, {sC}, {sC8}",
                  f"s_lshr_b32 {t2s}, {sC}, 13", f"s_lshl_b32 {t2s}, {t2s}, 2"): A(x)
        RAW = 48; LO = 120
        A("s_waitcnt lgkmcnt(0)")
        if g.o['ts']: A("s_mov_b32 s101, s80")
        def xl(m): return VM(f"buffer_load_dwordx4 {v4(RAW+4*m)}, v34, {X}, {sXW if m < 9 else sXO} offen offset:{128*(m%9)}", f"X{m}")
        tch1 = VM(f"buffer_load_dword v47, v36, {W1}, {sT2} offen")
        if o['tb1'] == -1: e.item(tch1)
        for m in range(9 + o['nx']):
            e.item(xl(m))
            if o['tb1'] == -2 and m == 8: e.item(tch1)
        if o['tb1'] == -3: e.item(tch1)
        g.stamp(e, 'p1')
        A(f"s_load_dword s54, s[36:37], {sC}"); A(f"s_load_dword s56, s[52:53], {t2s}")
        A(f"v_lshrrev_b32 v22, 4, v{vL}"); A("v_lshlrev_b32 v23, 1, v22"); A(f"v_xor_b32 v23, v23, v{vL}"); A(f"v_lshlrev_b32 v{vXH}, 4, v23")
        A(f"v_add_u32 v{vXH2}, 0x10000, v{vXH}"); A(f"s_lshr_b32 {t2s}, {sW}, 1"); A(f"s_lshl_b32 {t2s}, {t2s}, 12"); A(f"s_and_b32 {t1s}, {sW}, 1"); A(f"s_lshl_b32 {t1s}, {t1s}, 3")
        A(f"s_add_u32 {t2s}, {t2s}, {t1s}"); A(f"v_add_u32 v{vHW}, {t2s}, v{vXH}")
        A(f"v_cmp_eq_u32 vcc, 0, v0"); A(f"v_mov_b32 v23, {OOB}"); A(f"v_lshlrev_b32 v{vQ8}, 3, v22"); A(f"v_cndmask_b32 v{vF0}, v23, 0, vcc")
        A(f"v_lshlrev_b32 v{vL16}, 4, v{vL}")
        A(f"s_lshl_b32 {t2s}, {sW}, 6"); A(f"s_add_u32 {t2s}, {t2s}, {BIASL}"); A(f"v_lshl_add_u32 v{vBA}, v22, 4, {t2s}")
        A(f"v_lshrrev_b32 v22, 5, v{vL}"); A(f"v_bfe_u32 v23, v{vL}, 3, 2"); A("v_lshl_add_u32 v22, v22, 3, v23")
        A(f"v_bfe_u32 v20, v{vL}, 4, 2"); A("v_lshlrev_b32 v20, 1, v20"); A("v_xor_b32 v20, v20, v21"); A("v_lshlrev_b32 v20, 4, v20")
        A(f"s_movk_i32 {t0s}, 9216"); A(f"v_mad_u32_u24 v{vW1}, v22, {t0s}, v20")
        for m in range(1, 4): A(f"v_add_u32 v{vW1+m}, {(16*(m&1)+4*(m>>1))*9216-1024*m}, v{vW1}")
        A(f"s_movk_i32 {t0s}, 1152"); A(f"v_mad_u32_u24 v{vW2}, v35, {t0s}, v20")
        for m in range(1, 4): A(f"v_add_u32 v{vW2+m}, {8*m*1152-1024*m}, v{vW2}")
        A(f"s_mul_i32 {t0s}, {sW}, 294912"); A(f"s_add_u32 {sWA}, {sWA}, {t0s}"); A(f"s_sub_u32 {sWA2}, {sWA}, {18*294912-128}")
        A(f"s_cmp_lt_u32 {sW}, 2"); A(f"s_cselect_b32 {sWA2}, {sWA}, {sWA2}")
        A(f"v_xor_b32 v23, {sW}, v23"); A("v_lshlrev_b32 v23, 5, v23"); A(f"v_lshrrev_b32 v22, 2, v{vL}"); A("v_lshl_add_u32 v23, v22, 7, v23")
        A(f"v_and_b32 v22, 3, v{vL}"); A(f"v_lshl_add_u32 v{vTR}, v22, 3, v23"); A(f"v_add_u32 v{vTR+1}, 0x10000, v{vTR}"); A(f"v_add_u32 v{vTR+2}, 0x20000, v{vTR}")
        A(f"s_mov_b32 {sNB}, {f2u(-BETA):#x}"); A(f"s_mov_b32 {sA}, {f2u(AC):#x}"); A(f"s_mov_b32 {sMK}, 0xffff0000"); A(f"s_mov_b32 {sIA}, {f2u(1/AC):#x}"); A(f"s_mov_b32 {sLSB}, 0x10001")
        A("v_lshlrev_b32 v26, 1, v22"); A("v_xor_b32 v26, v26, v35")
        A("v_lshl_add_u32 v24, v22, 4, v26"); A(f"s_lshl_b32 {t2s}, {sW}, 10"); A(f"v_lshl_add_u32 v24, v24, 4, {t2s}")
        A(f"v_bfe_u32 v26, v{vL}, 2, 1"); A("v_lshl_add_u32 v24, v26, 12, v24"); A("v_add_u32 v27, 0x8000, v24")
        A(f"s_lshl_b32 {t2s}, {sW}, 7"); A(f"s_add_u32 {t2s}, {t2s}, {STATS}"); A(f"v_lshl_add_u32 v25, v35, 3, {t2s}")
        A(f"s_lshl_b32 {t2s}, {sJ}, 7"); A(f"s_add_u32 {t0s}, {sXW}, {t2s}"); A(f"v_add_u32 v40, {t0s}, v34")
        A(f"s_mul_i32 {t0s}, {sT}, 73728"); A(f"s_add_u32 {t2s}, {t2s}, {t0s}"); A(f"s_sub_u32 {t2s}, {t2s}, 9216")
        A(f"s_mul_i32 {t1s}, {sJ}, 9216"); A(f"s_add_u32 {t1s}, {t1s}, {t0s}"); A(f"s_add_u32 {t1s}, {t1s}, 1024"); A(f"s_sub_u32 {t0s}, {t1s}, 9216")
        A(f"s_cmp_eq_u32 {sW}, 1"); A(f"s_cselect_b32 {t0s}, {t0s}, {t1s}"); A(f"s_cmp_eq_u32 {sW}, 0"); A(f"s_cselect_b32 {t0s}, {t2s}, {t0s}"); A(f"v_add_u32 v41, {t0s}, v34")
        A(f"v_and_b32 v38, 15, v{vL}"); A("v_mul_u32_u24 v38, 1152, v38"); A(f"s_lshl_b32 {t2s}, {sJ}, 7"); A(f"s_add_u32 {t2s}, {t2s}, {sXW}"); A(f"v_add_u32 v38, {t2s}, v38")
        A(f"v_and_b32 v23, 1, v{vL}"); A("v_mul_u32_u24 v23, 1152, v23"); A(f"s_mul_i32 {t2s}, {sW}, 2304"); A(f"s_add_u32 {t2s}, {t2s}, {t1s}"); A(f"v_add_u32 v23, {t2s}, v23")
        A(f"v_cmp_gt_u32 vcc, 16, v{vL}"); A(f"s_mul_i32 {t2s}, {sW}, 576"); A(f"s_add_u32 {t2s}, {t2s}, {BIASL}"); A("v_cndmask_b32 v38, v23, v38, vcc")
        A(f"v_lshl_add_u32 v26, v39, 1, {t2s}")
        A(f"v_and_b32 v35, 15, v{vL}"); A("v_lshlrev_b32 v35, 3, v35"); A("v_mov_b32 v46, 0")
        bil = VM(f"buffer_load_dwordx2 v[32:33], v39, {B1}, {t4s} offen", "BI")
        kvt = [VM(f"buffer_load_dword v47, v38, {K_}, 0 offen"), VM(f"buffer_load_dword v47, v38, {V_}, 0 offen")]
        ev = {}
        def at(i, x): ev.setdefault(i, []).extend(x)
        if o['nx'] == 9: e.item(bil)
        else: at(9 - o['nx'], [bil])
        if o['tkt'] == -1: e.items(kvt)
        if o.get('tsh', -1) == -1 and o['nx'] == 9: e.items(g.shld())
        else: at(max(o.get('tsh', -1), 10 - o['nx']), g.shld())
        for x in g.scal(): A(x)
        g.stamp(e, 'p6')
        A(f"s_mov_b32 {t0s}, 0x3f803f80")
        for i, m in enumerate(range(9 + o['nx'], 18)): ev.setdefault(i, []).insert(0, xl(m))
        mid = []
        for s in range(o['npro']):
            sa, vm = g.dma(s); mid.append(sa + vm[:1]); mid += [[x] for x in vm[1:]]
        if o['tb1'] >= 0: at(o['tb1'], [tch1])
        if o['tkt'] is not None and o['tkt'] >= 0: at(o['tkt'], kvt)
        for i, x in enumerate(mid): at(o['m0'] + i // o['mpr'], x)
        def slot(i): e.items(ev.pop(i, []))
        def wr(m): e.dsop(f"ds_write_b128 v{24 if m % 9 < 4 else 27}, {v4(RAW+4*m)} offset:{((m % 9) if m % 9 < 4 else m % 9 - 4)*8192 + 128*(m//9)}")
        late = o.get('wlate', 0)
        def biasw():
            e.wait("BI")
            A("v_lshlrev_b32 v20, 16, v32"); A(f"v_and_b32 v21, {sMK}, v32"); A("v_lshlrev_b32 v22, 16, v33"); A(f"v_and_b32 v23, {sMK}, v33")
            for i in range(4): A(f"v_mul_f32 v{20+i}, {sA}, v{20+i}")
            e.dsop("ds_write_b128 v26, v[20:23]")
        for hb in range(2):
            for i in range(4): A(f"v_mov_b32 v{20+i}, 0")
            for m in range(9 * hb, 9 * hb + 9):
                e.wait(f"X{m}")
                g.stamp(e, f'x{m}')
                slot(m + 9 * hb)
                for i in range(4):
                    r = RAW + 4 * m + i; lo = LO + 4 * m + i
                    A(f"v_dot2c_f32_bf16 v{20+(i&1)}, {t0s}, v{r}"); A(f"v_dot2c_f32_bf16 v{22+(i&1)}, v{r}, v{r}")
                    A(f"v_lshlrev_b32 v{lo}, 16, v{r}"); A(f"v_and_b32 v{r}, {sMK}, v{r}")
            g.stamp(e, f'ln1{hb}')
            A("s_nop 0")
            A("v_add_f32 v20, v20, v21"); A("v_add_f32 v22, v22, v23"); A("s_nop 0")
            for dp in ("quad_perm:[1,0,3,2]", "quad_perm:[2,3,0,1]", "row_half_mirror"):
                A(f"v_add_f32_dpp v20, v20, v20 {dp} row_mask:0xf bank_mask:0xf"); A(f"v_add_f32_dpp v22, v22, v22 {dp} row_mask:0xf bank_mask:0xf"); A("s_nop 0")
            A(f"v_mul_f32 v20, {f2u(1/576):#x}, v20"); A(f"v_mul_f32 v22, {f2u(1/576):#x}, v22")
            A("v_fma_f32 v22, -v20, v20, v22"); A("v_max_f32 v22, 0, v22")
            A("v_cvt_pk_bf16_f32 v21, v20, v22")
            A(f"v_and_b32 v22, {sMK}, v21"); A("v_lshlrev_b32 v20, 16, v21")
            A(f"v_add_f32 v22, {f2u(1e-5):#x}, v22"); A("v_cvt_pk_bf16_f32 v22, v22, v22"); A(f"v_and_b32 v22, {sMK}, v22")
            A("v_sqrt_f32 v22, v22"); A("s_nop 0"); A("v_cvt_pk_bf16_f32 v22, v22, v22"); A(f"v_and_b32 v22, {sMK}, v22")
            sr = 28 + 2 * hb
            A("v_rcp_f32 v22, v22"); A("s_nop 0"); A(f"v_mul_f32 v{sr}, {sA}, v22"); A(f"v_mul_f32 v{sr+1}, -v20, v{sr}")
            if not late: e.dsop(f"ds_write_b64 v25, {v2(sr)} offset:{64*hb}")
            if not late and hb == 1: biasw()
            for m in range(9 * hb, 9 * hb + 9):
                r = RAW + 4 * m; lo = LO + 4 * m
                for h in (0, 2):
                    A(f"v_pk_fma_f32 {v2(lo+h)}, {v2(lo+h)}, {v2(sr)}, {v2(sr)} op_sel:[0,0,1] op_sel_hi:[1,0,1]")
                    A(f"v_pk_fma_f32 {v2(r+h)}, {v2(r+h)}, {v2(sr)}, {v2(sr)} op_sel:[0,0,1] op_sel_hi:[1,0,1]")
                for i in range(4): A(f"v_cvt_pk_bf16_f32 v{r+i}, v{lo+i}, v{r+i}")
                if not late: wr(m)
                slot(m + 9 * hb + 9)
            g.stamp(e, f'lnw{hb}')
        if late:
            for m in range(18): wr(m)
            for hb in range(2): e.dsop(f"ds_write_b64 v25, {v2(28+2*hb)} offset:{64*hb}")
            biasw()
        after = []
        for i in sorted(ev):
            if i < 50: e.items(ev[i])
            else: after += ev[i]
        g.stamp(e, 'ev')
        if o['kvpro'] == 1:
            for sa, vm in g.kvdma(): e.items(sa + vm)
        g.stamp(e, 'kvi')
        if o.get('bar2'):
            e.wait(None, 'ALL'); assert 'lgkmcnt(0)' in e.L[-1]; e.bar(); g.stamp(e, 'lg')
            e.dsop(f"ds_read_b128 {v4(BIAS)}, v{vBA}", "Q0")
            for ks in range(o['bar2']): e.items(g.fragread(ks, "Q0"))
            e.wait("D0"); e.bar(); g.stamp(e, 'ln2'); e.items(g.tr(0))
        else:
            e.wait("D0", 'ALL'); assert 'lgkmcnt(0)' in e.L[-1]; g.stamp(e, 'lg'); e.bar(); g.stamp(e, 'ln2')
            e.items(g.fragread(0, "Q0")); e.items(g.tr(0))
            e.dsop(f"ds_read_b128 {v4(BIAS)}, v{vBA}", "Q0")
            for ks in range(1, 4): e.items(g.fragread(ks, "Q0"))
        e.items(after)
        if o['kvpro'] == 2:
            for sa, vm in g.kvdma(): e.items(sa + vm)
        e.items(g.kv_addr())

    def scal(g):
        return [f"s_mul_i32 {sG2}, {sJ}, 663552", f"s_mul_i32 {t0s}, {sW}, 36864", f"s_add_u32 {sG2}, {sG2}, {t0s}",
                f"s_mul_i32 {t0s}, {sT}, {9*65536}", f"s_add_u32 {sG8P}, {t0s}, {P0}", f"s_lshl_b32 {t1s}, {sW}, 11", f"s_add_u32 {t0s}, {sG8P}, {t1s}",
                f"s_lshl_b32 {t1s}, {sJ}, 13", f"s_add_u32 {sPS}, {t0s}, {t1s}", f"s_lshl_b32 {t1s}, {sJ}, 16", f"s_add_u32 {sPL}, {t0s}, {t1s}",
                f"s_add_u32 {sG8P}, {sG8P}, {8*65536}", f"s_lshr_b32 {t1s}, {sJ}, 1", f"s_lshl_b32 {t1s}, {t1s}, 11", f"s_add_u32 {sG8P}, {sG8P}, {t1s}",
                f"s_lshr_b32 {t1s}, {sW}, 1", f"s_lshl_b32 {t1s}, {t1s}, 10", f"s_add_u32 {sG8P}, {sG8P}, {t1s}",
                f"s_and_b32 {t1s}, {sJ}, 1", f"s_lshl_b32 {t1s}, {t1s}, 9", f"s_add_u32 {sG8P}, {sG8P}, {t1s}",
                f"s_and_b32 {t1s}, {sW}, 1", f"s_lshl_b32 {sSEL}, {t1s}, 4", f"s_sub_u32 {sSEL}, 16, {sSEL}", f"s_lshl_b32 {t1s}, {t1s}, 3", f"s_add_u32 {sG8P}, {sG8P}, {t1s}",
                f"s_lshl_b32 {sYB}, {sT}, 7", f"s_add_u32 {sYB}, {sYB}, {Y0}"]
    def scal2(g):
        return [S(x) for x in (f"s_lshr_b32 {t0s}, {sW}, 1", f"s_and_b32 {t1s}, {sW}, 1", f"s_lshl_b32 {t1s}, {t1s}, 11",
                               f"s_mul_i32 {sFm}, {t0s}, {FP}", f"s_add_u32 {sFm}, {sFm}, {t1s}", f"s_add_u32 {sFm}, {sFm}, 32",
                               f"s_lshl_b32 {sFo}, {t0s}, 1", f"s_add_u32 {sFo}, {sFo}, {t1s}", f"s_add_u32 {sFo}, {sFo}, 2",
                               f"s_lshl_b32 {t0s}, {sT}, 2", f"s_add_u32 {t0s}, {t0s}, {sW}", f"s_and_b32 {t0s}, {t0s}, 63", f"s_mul_i32 {t0s}, {t0s}, 10368",
                               f"s_mul_i32 {sT3}, {sJ}, 663552", f"s_add_u32 {sT3}, {sT3}, {t0s}")]
    def kv_addr(g):
        a, b = KA, KA + 1
        return [V(f"v_lshrrev_b32 v{a}, 4, v{vL}"), V(f"v_bfe_u32 v{a+2}, v{vL}, 2, 2"), V(f"v_and_b32 v{a+3}, 3, v{vL}"), S(f"s_lshl_b32 {t2s}, {sW}, 5"),
                V(f"v_lshlrev_b32 v{a+2}, 7, v{a+2}"), V(f"v_lshl_add_u32 v{a+2}, v{a+3}, 3, v{a+2}"), S(f"s_add_u32 {t2s}, {t2s}, {KS}"), V(f"v_add_u32 v{a+2}, {t2s}, v{a+2}"),
                V(f"v_and_b32 v{b}, 1, v{a}"), V(f"v_lshl_add_u32 v{a}, v{a}, 10, v{a+2}"), V(f"v_lshl_add_u32 v{b}, v{b}, 9, v{a+2}"),
                V(f"v_add_u32 v{a+2}, {STATS}, v35"), S(f"s_lshl_b32 {t2s}, {sW}, 7"), V(f"v_add_u32 v{a+3}, {t2s}, v{a+2}")] + g.scal2()
    def kv_reads(g):
        a, b = KA, KA + 1; q = []
        for h in range(2):
            for i in range(3): q.append(DS(f"ds_read_b64_tr_b16 {v2(KR+6*h+2*i)}, v{a} offset:{512 + 4096*h + 512*i}", "KVR"))
            for i in range(2): q.append(DS(f"ds_read_b64_tr_b16 {v2(VR+4*h+2*i)}, v{a} offset:{VS-KS + 4096*h + 512*i}", "KVR"))
        for i in range(2): q.append(DS(f"ds_read_b64_tr_b16 {v2(K8+2*i)}, v{b} offset:{G8K-KS + 512 + 512*i}", "KVR"))
        q.append(DS(f"ds_read_b64_tr_b16 {v2(V8)}, v{b} offset:{G8V-KS}", "KVR"))
        return q
    def st_reads(g):
        a = KA
        return [DS(f"ds_read_b64 {v2(ST+2*nt)}, v{a+2} offset:{128*nt}", "STL") for nt in range(4)] + [DS(f"ds_read_b64 {v2(ST+8)}, v{a+3}", "STL")]
    def kv_comp(g, th, t, dl):
        a = KA
        th.add(t, [W("SH", "KVR"), V(f"v_add_u32 v46, {TAGC:#x}, v46"), V(f"v_and_b32 v{a}, 7, v{vL}"), V(f"v_readfirstlane_b32 {sTAG}, v46"),
                   V(f"v_lshlrev_b32 v{a}, 1, v{a}"), V(f"v_lshrrev_b32 v{vTA}, v{a}, v46"), V(f"v_xor_b32 v46, v46, v{vL}"), V(f"v_lshrrev_b32 v{vTB}, 1, v{vTA}"),
                   V(f"v_bfi_b32 v{vTA}, 1, v46, v{vTA}"), V("v_not_b32 v46, v46"), V(f"v_bfi_b32 v{vTB}, 1, v46, v{vTB}"),
                   V(f"v_and_b32 v{a}, 15, v{vL}"), V(f"v_lshlrev_b32 v{a}, 12, v{a}"), V(f"v_sub_u32 v{a+1}, 24, v{vQ8}"), V(f"v_lshl_add_u32 v{a+1}, v{a+1}, 1, v{a}")], dl)
        def run(kr, vr, n, out):
            q = [ext(KU + e, kr + (e >> 1), e & 1) for e in range(1, 4)]
            for s in range(n):
                o = KO + s; tt = a + 4
                q += [ext(KU + s + 4, kr + ((s + 4) >> 1), s & 1), V(f"v_mul_f32 v{o}, v{KU+s+1}, v{KW+3}"), V(f"v_fmac_f32 v{o}, v{KU+s+2}, v{KW+2}"), V(f"v_fmac_f32 v{o}, v{KU+s+3}, v{KW+1}"),
                      ext(tt, vr + (s >> 1), s & 1), V(f"v_fmac_f32 v{o}, v{KU+s+4}, v{KW}"), V(f"v_mul_f32 v{o}, v{o}, v{tt}")]
            for d in range(n // 2): q.append(V(f"v_cvt_pk_bf16_f32 v{out+d}, v{KO+n-1-2*d}, v{KO+n-2-2*d}"))
            return q
        base = [f"s_lshl_b32 {t2s}, {sT}, 7", f"s_lshl_b32 {t1s}, {sW}, 16", f"s_sub_u32 {t1s}, {t1s}, {t2s}", f"s_add_u32 {t1s}, {t1s}, {KV0+31*128}"]
        th.add(t, [ext(KW + i, 42 + (i >> 1), i & 1) for i in range(4)], dl)
        for h in range(2):
            th.addsplit(t, run(KR + 6 * h, VR + 4 * h, 8, KR + 6 * h), 8, dl)
            th.add(t, [S(x) for x in base + [f"s_lshl_b32 {t2s}, {sJ}, 18", f"s_add_u32 {t2s}, {t2s}, {t1s}"]] +
                   [VM(f"buffer_store_dwordx4 {v4(KR+6*h)}, v{a+1}, {WS}, {t2s} offen offset:{64*(1-h)} sc1")], dl)
        th.addsplit(t, [ext(KW + i, 44 + (i >> 1), i & 1) for i in range(4)] + run(K8, V8, 4, K8), 8, dl)
        th.add(t, [V(f"v_sub_u32 v{a+5}, 8, v{vQ8}"), V(f"v_cmp_gt_u32 vcc, 32, v{vL}"), V(f"v_add_u32 v{a}, v{a}, v{a+5}"), V(f"v_mov_b32 v{a+5}, {OOB}"), V(f"v_cndmask_b32 v{a}, v{a+5}, v{a}, vcc")] +
               [S(x) for x in base + [f"s_lshl_b32 {t2s}, {sJ}, 4", f"s_sub_u32 {t2s}, {t1s}, {t2s}", f"s_add_u32 {t2s}, {t2s}, {512*4096+112}"]] +
               [VM(f"buffer_store_dwordx2 {v2(K8)}, v{a}, {WS}, {t2s} offen sc1", "KVS")], dl)

    def conv_plan(g):
        m = []
        for b in range(2):
            for u in range(8):
                m.append((C8A, b == 0 and u == 0, ('g', v8G, 64 * b + 512 * u), ('f', v8F + (u >> 1), 128 * (u & 1) + 16 * b)))
                if u < 4: m.append((C8A + 4, b == 0 and u == 0, ('g', v8G + 1, 64 * (b + 56) + 512 * u), ('f', v8F + (u >> 1), 128 * (u & 1) + 16 * b)))
        for b in range(4):
            for u in range(8):
                for v in range(7 - u, -1, -1):
                    m.append((CA + 4 * (u + v), b == 0 and u == 0, ('g', vCG, 64 * (b - 8 * v + 56)), ('f', vCF + (u >> 1), 128 * (u & 1) + 16 * b)))
        return m
    def conv_read(g, k, r, tag):
        t, a, off = k
        if t == 'g': return [DS(f"ds_read_b128 {v4(r)}, v{a} offset:{off}", tag)]
        return [DS(f"ds_read2_b32 {v2(r+2*i)}, v{a} offset0:{off+2*i} offset1:{off+2*i+1}", tag) for i in range(2)]
    def conv_setup(g):
        q = [S(f"s_bfe_u32 {t0s}, {sC}, 0x1000c"), S(f"s_lshl_b32 {t0s}, {t0s}, 4"), S(f"s_lshr_b32 s56, s56, {t0s}"), S("s_lshl_b32 s56, s56, 16"),
             S(f"s_lshl_b32 {t0s}, s54, 16"), V(f"v_mov_b32 v132, {t0s}"), V("v_add_f32 v132, s56, v132"), V("v_cvt_pk_bf16_f32 v132, v132, v132"),
             V(f"v_mov_b32 v133, s54"), V(f"v_bfi_b32 v132, {sMK}, v133, v132"),
             V(f"v_bfe_u32 v134, v{vL}, 3, 1"), V("v_lshlrev_b32 v135, 4, v134"), V("v_sub_u32 v135, 16, v135"), V("v_lshlrev_b32 v132, v135, v132"),
             V(f"v_and_b32 v135, 7, v{vL}"), V("v_cmp_eq_u32 vcc, 7, v135"), V(f"v_mul_u32_u24 v136, {FP}, v134"), V("v_lshl_add_u32 v136, v135, 2, v136"),
             S(f"s_min_u32 {t0s}, {sW}, 2"), S(f"s_mul_i32 {t1s}, {t0s}, {CBS}"), S(f"s_add_u32 {t1s}, {t1s}, {CB0}"),
             V(f"v_cndmask_b32 v128, 0, v132, vcc"), V(f"v_add_u32 v129, {t1s}, v136"),
             V(f"v_min_u32 v130, 59, v{vL}"), S(f"s_add_u32 {t1s}, {t1s}, {GB+4096}"), V(f"v_lshl_add_u32 v130, v130, 3, {t1s}"),
             S(f"s_lshl_b32 {t0s}, {t0s}, 9"), S(f"s_add_u32 {t0s}, {t0s}, {CB0+3*CBS}"), V(f"v_lshl_add_u32 v131, v{vL}, 3, {t0s}"), V("v_mov_b32 v132, 0"), V("v_mov_b32 v133, 0")]
        wr = [DS(f"ds_write_b32 v129, v128", "HWb"), DS("ds_write_b64 v130, v[132:133]", "HWb"), DS("ds_write_b64 v131, v[132:133]", "HWb")]
        la = [V(f"v_and_b32 v134, 1, v{vL}"), V(f"v_mul_u32_u24 v134, {FP}, v134"), V(f"v_and_b32 v135, 14, v{vL}"), V("v_lshl_add_u32 v134, v135, 1, v134"), V(f"v_lshl_add_u32 v134, v{vQ8}, 1, v134"),
              V(f"v_and_b32 v135, 15, v{vL}"), V("v_lshlrev_b32 v135, 5, v135"), V(f"v_lshlrev_b32 v136, 1, v{vQ8}"), V("v_sub_u32 v135, v136, v135"),
              S(f"s_lshr_b32 {t0s}, {sW}, 1"), S(f"s_mul_i32 {t0s}, {t0s}, {CBS}"), S(f"s_and_b32 {t1s}, {sW}, 1"), S(f"s_lshl_b32 {t1s}, {t1s}, 8"), S(f"s_add_u32 {t0s}, {t0s}, {t1s}"),
              S(f"s_add_u32 {t0s}, {t0s}, {CB0}"), V(f"v_add_u32 v{vCF}, {t0s}, v134"), S(f"s_add_u32 {t0s}, {t0s}, {GB+480}"), V(f"v_add_u32 v{vCG}, {t0s}, v135")]
        la += [V(f"v_add_u32 v{vCF+k}, {1024*k}, v{vCF}") for k in range(1, 4)]
        l8 = [S(f"s_lshl_b32 {t0s}, {sW}, 7"), S(f"s_add_u32 {t0s}, {t0s}, {CB0+2*CBS}"), V(f"v_add_u32 v{v8F}, {t0s}, v134"),
              S(f"s_add_u32 {t0s}, {t0s}, {GB+480}"), S(f"s_and_b32 {t1s}, {sT}, 3"), S(f"s_lshl_b32 {t1s}, {t1s}, 9"), S(f"s_add_u32 {t2s}, {t0s}, {t1s}"), S(f"s_sub_u32 {t0s}, {t0s}, {t1s}"),
              V(f"v_add_u32 v{v8G}, {t2s}, v135"), V(f"v_add_u32 v{v8G+1}, {t0s}, v135")]
        l8 += [V(f"v_add_u32 v{v8F+k}, {1024*k}, v{v8F}") for k in range(1, 4)]
        return q, wr, la, l8
    def ypack(g, d):
        f = [V(f"v_cvt_pk_bf16_f32 v{d+i}, v{d+2*i}, v{d+2*i+1}") for i in range(4)]
        f += [V(f"v_mov_b32 v{d+4}, v{d}"), V(f"v_mov_b32 v{d+5}, v{d+1}")]
        f += [V(f"v_mov_b32_dpp v{d+i}, v{d+2+i} row_ror:8 row_mask:0xf bank_mask:0xc") for i in range(2)]
        f += [V(f"v_mov_b32_dpp v{d+2+i}, v{d+4+i} row_ror:8 row_mask:0xf bank_mask:0x3") for i in range(2)]
        return f + [tagit(d + i, i) for i in range(4)]

    def pload(g, u, raw):
        return [S(f"s_sub_u32 {t1s}, {sJ}, {u}"), S(f"s_and_b32 {t1s}, {t1s}, 7"), S(f"s_lshl_b32 {t1s}, {t1s}, 13"), S(f"s_add_u32 {t1s}, {t1s}, {sPL}"),
                VM(f"buffer_load_dwordx4 {v4(raw)}, v{vL16}, {WS}, {t1s} offen sc1", f"PL{u}"), VM(f"buffer_load_dwordx4 {v4(raw+4)}, v{vL16}, {WS}, {t1s} offen offset:1024 sc1", f"PL{u}")]
    def padd(g, th, t, u, raw):
        th.add(t, [g.SS(f'a{u}')] + g.mchk(g.pload(u, raw), f"PL{u}", g.ab(raw, 8)))
        q = []
        for i in range(8): q += [ext(GT, raw + i, 0), ext(GT + 1, raw + i, 1), V(f"v_add_f32 v{SUM+2*i}, v{SUM+2*i}, v{GT}"), V(f"v_add_f32 v{SUM+2*i+1}, v{SUM+2*i+1}, v{GT+1}")]
        th.addsplit(t, q, 8)

    def main(g, e):
        o = g.o; c0 = o['c0']; pu = 44 + o['dly']; thw = o['thw']
        idx = {}
        for i, p in enumerate(g.cstep): idx.setdefault(p, []).append(i)
        steps = [g.step(p, ["C%d" % i for i in idx.get(p, [])]) for p in range(81)]
        gl = [(p, i) for p in range(81) for i in range(len(steps[p].mf))]; gi = {x: k for k, x in enumerate(gl)}
        def gap(t): p = int(t); return gi[p, int((t - p) * len(steps[p].mf))]
        last = 0
        for sa, vm, tt in g.stream:
            g0 = gap(tt[0])
            for k, x in enumerate(sa):
                p, i = gl[max(last, g0 - len(sa) + k)]; steps[p].gaps[i].append(x)
            for x, t in zip(vm, tt):
                last = gap(t); p, i = gl[last]; steps[p].gaps[i].append(x)
        for p in range(80): steps[p].place(g.tr(p + 1), 0, int(len(steps[p].mf) * o.get('trl', 0.7)))
        steps[0].lt.append("Q0")
        q0 = o.get('bar2') or 4
        for p in range(4):
            rd = []
            for ks in range(max(q0, 4 * p + 4), min(18, 4 * p + 8)): rd += g.fragread(ks, f"Q{p+1}")
            if rd: steps[p].place(rd, 0, 14); steps[p + 1].lt.append(f"Q{p+1}")
        for s in range(1, 9):
            p = int(g.tbeg[0, s]); steps[p - 1].place([DS(f"ds_read_b128 {v4(BIAS+4*(s&1))}, v{vBA} offset:{256*s}", f"T{p}")], 8, 14)
        TG, TK, TT, TS, TL, TF = [Th(x) for x in ("gelu", "kv", "touch", "store", "load", "fin")]
        steps[o['kvr']].vt.append("KVD")
        steps[o['kvr']].place(g.kv_reads(), 0, 16); steps[o['kvr'] + 1].place(g.st_reads(), 0, 16)
        assert o['tr4'] >= o['kvr'] + 2
        steps[o['tr4']].lt += ["KVR", "STL"]
        assert o['kvby'] <= g.tend[0, 3] and o['kvby'] < o['tflag']
        g.kv_comp(TK, o['kvr'] + 1, o['kvby'])
        steps[o['tflag']].vt += ["KVS"]
        TK.add(o['tflag'], [V(f"v_mov_b32 v168, {sTAG}"), S(f"s_lshl_b32 {t0s}, {sT}, 3"), S(f"s_add_u32 {t0s}, {t0s}, {sJ}"), S(f"s_lshl_b32 {t0s}, {t0s}, 2"),
                            VM(f"buffer_store_dword v168, v{vF0}, {WS}, {t0s} offen offset:{KF0} sc1")], o['tflag'] + 0.7)
        pl = [VM(f"buffer_load_dwordx4 {v4(168)}, v{vL16}, {WS}, 0 offen offset:{KF0} sc1", "PK")]
        TK.add(o['tpoll'], pl, o['tpoll'] + 0.7)
        TK.add(o['tchk'], g.chk(pl, "PK", [f"v_xor_b32 v168, {sTAG}, v168"] + [f"v_bitop3_b32 v168, v{168+i}, v168, {sTAG} bitop3:0xde" for i in range(1, 4)],
                                ["v_cmp_ne_u32 vcc, 0, v168", "s_cmp_lg_u64 vcc, 0"]), min(o['tchk'] + 2, 40.9))
        for s in range(9):
            dl = g.tbeg[0, s + 3] if s + 3 < 9 else 41
            dl = min(dl, g.tend[0, s] + o.get('gw', 5.5), thw if s == 6 else 99)
            if s == 8: dl = pu - 1 - o.get('hbm', 0.2)
            TG.addsplit(g.tend[0, s] + 0.2, g.gelu(s), 13, dl)
        tc = []
        for i, tt in enumerate(o['tw1']):
            tc.append((tt, [V(f"v_min_u32 v{GT}, 8, v{vL}"), V(f"v_mul_u32_u24 v{GT}, 9216, v{GT}"), VM(f"buffer_load_dword v{DUM}, v{GT}, {W1}, {sT2} offen offset:{128*(9-len(o['tw1'])+i)}")]))
        nl = -(-81 // max(1, len(o['tw2'])))
        for i, tt in enumerate(o['tw2']):
            tc.append((tt, [V(f"v_min_u32 v{GT}, {min(nl, 81-nl*i)-1}, v{vL}"), V(f"v_lshlrev_b32 v{GT}, 7, v{GT}"), S(f"s_add_u32 {t0s}, {sT3}, {128*nl*i}"),
                            VM(f"buffer_load_dword v{DUM}, v{GT}, {W2}, {t0s} offen")]))
        tc.append((o['tss'], [V(f"v_min_u32 v{GT}, 32, v{vL}"), V(f"v_lshlrev_b32 v{GT}, 7, v{GT}"), VM(f"buffer_load_dword v{DUM}, v{GT}, {SSM}, {sC} offen")]))
        if o.get('tlb'):
            tt, nl, sh = o['tlb']
            tc.append((tt, [S(f"s_lshr_b32 {t0s}, s2, 3"), S(f"s_lshl_b32 {t0s}, {t0s}, 2"), S(f"s_add_u32 {t0s}, {t0s}, {sW}"), S(f"s_mul_i32 {t0s}, {t0s}, {nl << sh}"),
                            S(f"s_add_u32 {t0s}, {t0s}, {KV0}"), V(f"v_min_u32 v{GT}, {nl-1}, v{vL}"), V(f"v_lshlrev_b32 v{GT}, {sh}, v{GT}"), VM(f"buffer_load_dword v{DUM}, v{GT}, {WS}, {t0s} offen")]))
        for tt, its in sorted(tc, key=lambda x: x[0]): TT.add(tt, its, tt + 0.8)
        hw = []
        for s in range(7): hw += g.hwrite(s, vHW, 8192 * s, "HWa")
        if o.get('hwtop'): steps[thw].top += hw
        else: steps[thw].place(hw, 0, 15)
        steps[thw + 1].lt.append("HWa")
        for i in range(4):
            p = 37 + i; rd = []
            assert p > thw
            for ks in range(4 * i, min(14, 4 * i + 4)): rd += g.fragread(ks, f"H{i}")
            steps[p].place(rd, 0, 15)
        steps[40].lt.append("H0"); steps[41].lt += ["H1", "H2", "H3"]
        su, w2, la, l8 = g.conv_setup()
        dl = pu - 1 - o.get('hbm', 0.2)
        TF.add(thw + 1, su, dl - 1); TF.add(thw + 1, la, dl - 1)
        TG.add(41, l8 + [V(f"v_add_u32 v{vBA}, {H7}, v{vHW}"), V(f"v_add_u32 v{vXH2}, {H7}, v{vXH}"), ('grp', g.hwrite(7, vBA, 0, "HWb") + g.hwrite(8, vHW, H8, "HWb") + w2)], dl)
        steps[pu - 1].lt.append("HWb")
        rd = []
        for ks in range(14, 18): rd += g.fragread(ks, f"T{pu}", True)
        steps[pu - 1].place(rd, 0, 13)
        assert c0 >= pu
        first = {}; lastu = {}; pos = []
        for i, (d, z, kg, kf) in enumerate(g.plan):
            p = g.cstep[i]; ps = (p, steps[p].cpos[idx[p].index(i)]); pos.append(ps)
            for k in (kg, kf): first.setdefault(k, ps); lastu[k] = ps
        pm = g.cstep[24] - o.get('mlead', 1)
        steps[c0 - 1].vt += ["F2", "G2"]; steps[pm].vt += ["F0", "G0", "F1", "G1"]
        assert max(g.iss["F2"], g.iss["G2"]) < c0 - 1.5 and max(g.iss[x] for x in ("F0", "G0", "F1", "G1")) < pm - 0.5, g.iss
        fr = {POOL + 4 * i: (c0 - 1, -1) for i in range(o['npool'])}; reg = {}
        for k in sorted(first, key=lambda k: first[k]):
            r = min(fr, key=lambda r: fr[r]); lo = fr[r]; fr[r] = lastu[k]; reg[k] = r
            if k[1] < 80: lo = max(lo, (pm, -1))
            pf = first[k][0]
            cand = [(p, i) for p in range(max(lo[0], pf - 2), pf) for i in range(len(steps[p].mf) - (4 if p == pf - 1 else 0)) if (p, i) >= lo]
            assert cand, (k, lo, first[k])
            for it in g.conv_read(k, r, f"C{pf}"):
                ld = {p: sum(steps[p].heavy(i) for i in range(len(steps[p].mf))) for p in {c[0] for c in cand}}
                p, i = min(cand, key=lambda c: (steps[c[0]].heavy(c[1]), ld[c[0]], c))
                steps[p].gaps[i].append(it)
            if f"C{pf}" not in steps[pf].lt: steps[pf].lt.append(f"C{pf}")
        for (d, z, kg, kf), (p, i) in zip(g.plan, pos): steps[p].mf[i] = f"{MF} {v4(d)}, {v4(reg[kg])}, {v4(reg[kf])}, {'0' if z else v4(d)}"
        sto = []
        a = v8F
        f = [V(f"v_bfe_u32 v{a}, v{vL}, 3, 1"), S(f"s_and_b32 {t0s}, {sT}, 3"), S(f"s_lshl_b32 {t1s}, {t0s}, 1"), S(f"s_sub_u32 {t1s}, 7, {t1s}"), V(f"v_mul_u32_u24 v{a}, {t1s}, v{a}"),
             S(f"s_sub_u32 {t0s}, 7, {t0s}"), V(f"v_sub_u32 v{a}, {t0s}, v{a}"), V(f"v_lshlrev_b32 v{a}, 9, v{a}"), V(f"v_lshl_add_u32 v{a}, v{vQ8}, 4, v{a}"),
             V(f"v_and_b32 v{a+1}, 0x70, v{vL16}"), V(f"v_add_u32 v{a}, v{a}, v{a+1}")]
        f += g.ypack(C8A) + [S(f"s_mul_i32 {t1s}, {sW}, {YP}"), S(f"s_add_u32 {t1s}, {t1s}, {sC8}"), S(f"s_add_u32 {t1s}, {t1s}, {Y0}"),
                             VM(f"buffer_store_dwordx4 {v4(C8A)}, v{a}, {WS}, {t1s} offen sc1")]
        assert o['tbase'] >= g.c8end + 1
        sto.append((g.c8end + 0.1, f, o['tbase'] - 0.2))
        f = [V(f"v_and_b32 v{vCF}, 8, v{vL}"), V(f"v_lshlrev_b32 v{vCF}, 6, v{vCF}"), V(f"v_lshl_add_u32 v{vCF}, v{vQ8}, 4, v{vCF}"), V(f"v_and_b32 v{vCG}, 0x70, v{vL16}"),
             V(f"v_add_u32 v{vCF}, v{vCF}, v{vCG}"), S(f"s_and_b32 {t0s}, {sW}, 1"), S(f"s_mul_i32 {t0s}, {t0s}, {YP}"), S(f"s_lshr_b32 {t1s}, {sW}, 1"), S(f"s_lshl_b32 {t1s}, {t1s}, 12"),
             S(f"s_add_u32 {t0s}, {t0s}, {t1s}"), S(f"s_add_u32 {sC0}, {sC0}, {t0s}"), S(f"s_add_u32 {sC0}, {sC0}, {Y0}")]
        sto.append((g.cend - 1, f, g.cend + 0.4))
        tl = {}
        for i, (d, z, kg, kf) in enumerate(g.plan): tl[d] = pos[i][0] + (pos[i][1] + 4) / len(steps[pos[i][0]].mf)
        for k in range(4):
            d = CA + 8 * k
            sto.append((max(g.cend - 1, tl[d], tl[d + 4]), g.ypack(d) + [VM(f"buffer_store_dwordx4 {v4(d)}, v{vCF}, {WS}, {sC0} offen offset:{1024*k} sc1")], g.cend + o.get('ydl', 1.2)))
        for u in range(8):
            a = g.aset(1, u); p = int(g.tend[1, u]); t = g.tend[1, u] + 0.25
            dl = min(int(g.tbeg[1, u + 2]) if u < 7 else 81, t + o.get('sdl', 2))
            pb = [S(f"s_add_u32 {sPB}, {sPS}, {8*65536}")] if u == 0 else [S(f"s_add_u32 {sPB}, {sJ}, {u}"), S(f"s_and_b32 {sPB}, {sPB}, 7"), S(f"s_lshl_b32 {sPB}, {sPB}, 16"), S(f"s_add_u32 {sPB}, {sPB}, {sPS}")]
            for np_ in range(2):
                d = a + 8 * np_
                sto.append((t, (pb if np_ == 0 else []) + [V(f"v_cvt_pk_bf16_f32 v{d+i}, v{d+2*i}, v{d+2*i+1}") for i in range(4)] + [tagit(d + i, i) for i in range(4)] +
                            [VM(f"buffer_store_dwordx4 {v4(d)}, v{vL16}, {WS}, {sPB} offen offset:{np_*1024} sc1")], dl))
        for t, its, dl in sorted(sto, key=lambda x: x[0]): TS.add(t, its, dl)
        f = [V(f"v_and_b32 v{GT}, 15, v{vL}"), V(f"v_mul_u32_u24 v{GT}, 1152, v{GT}"), V(f"v_add_u32 v{vO}, v{GT}, v{vQ8}"), V(f"v_and_b32 v{GT+1}, 8, v{vQ8}"), V(f"v_add_u32 v{GT}, v{GT}, v{GT+1}"),
             S(f"s_lshl_b32 {t2s}, {sJ}, 7"), S(f"s_lshl_b32 {t3s}, {sW}, 5"), S(f"s_add_u32 {t2s}, {t2s}, {t3s}"),
             S(f"s_mul_i32 {sXO}, {sT}, 73728"), S(f"s_add_u32 {sXO}, {sXO}, {t2s}"),
             VM(f"buffer_load_dwordx2 {v2(B2R)}, v{vQ8}, {B2}, {t2s} offen", "XL"),
             S(f"s_lshl_b32 {t2s}, {sJ}, 4"), S(f"s_add_u32 {t2s}, {t2s}, 1024"),
             VM(f"buffer_load_dwordx2 {v2(G8B)}, v{GT+1}, {B2}, {t2s} offen", "XL"), S(f"s_add_u32 {sXW}, {sXW}, {t2s}"),
             VM(f"buffer_load_dwordx2 {v2(G8X)}, v{GT}, {X}, {sXW} offen", "XL")]
        TL.add(o['txl'], f, o['txl'] + 1.5)
        for nt in range(4):
            TL.add(o['txl'] + 1 + nt * o.get('xst', 0.5), [S(f"s_add_u32 {t1s}, {sXO}, {nt*18432}"), VM(f"buffer_load_dwordx2 {v2(XR+2*nt)}, v{vO}, {X}, {t1s} offen", "XL")], o['txl'] + 2 + nt * o.get('xst', 0.5))
        f = [W("XL")] + [ext(24 + i, B2R + (i >> 1), i & 1) for i in range(4)] + [V(f"v_mul_f32 v{24+i}, {sA}, v{24+i}") for i in range(4)]
        for k in range(16): f += [ext(SUM + k, XR + (k >> 1), k & 1), V(f"v_fma_f32 v{SUM+k}, v{SUM+k}, {sA}, v{24+(k&3)}")]
        ld = [(o['tbase'], 'b', f)]
        l8 = [V(f"v_lshrrev_b32 v{GT+3}, 5, v{vL}"), V(f"v_lshlrev_b32 v{GT+3}, 15, v{GT+3}"), V(f"v_and_b32 v{GT+2}, 0x1f0, v{vL16}"), V(f"v_add_u32 v{GT+3}, v{GT+3}, v{GT+2}")]
        for i in range(4): l8 += [S(f"s_add_u32 {t1s}, {sG8P}, {8192*i}"), VM(f"buffer_load_dwordx2 {v2(2*i)}, v{GT+3}, {WS}, {t1s} offen sc1", "G8L")]
        t = g.tend[1, 0] + o['lag8']; ld.append((t, 'c', l8))
        ld.append((t + o['ladd'], 'c', g.mchk(l8, "G8L", g.ab(0, 8))))
        for h in range(2):
            f = [ext(GT, h, 0), ext(GT + 1, h, 1)]
            for i in range(1, 4):
                f += [ext(GT + 2, 2 * i + h, 0), ext(GT + 3, 2 * i + h, 1), V(f"v_add_f32 v{GT if i < 3 else 4+h}, v{GT}, v{GT+2}"), V(f"v_add_f32 v{GT+1 if i < 3 else 6+h}, v{GT+1}, v{GT+3}")]
            ld.append((t + o['ladd'], 'c', f))
        raw = {}; assert o['ladd'] < 4.5 and o['tbase'] < g.tend[1, 1] + o['lag']
        for u in range(1, 8):
            t = g.tend[1, u] + o['lag'] if u < 6 else o[f'l{u}']
            raw[u] = 24 if t < g.cend + o.get('ydl', 1.2) + 0.3 else (104, 112, 120)[u % 3]
            ld.append((t, 'l', g.pload(u, raw[u]))); ld.append((t + o['ladd'], 'p', u))
        f = [V(f"v_and_b32 v{vY}, 16, v{vQ8}"), V(f"v_sub_u32 v{vO8}, v{vO}, v{vY}"),
             V(f"v_and_b32 v{vY8}, 8, v{vL}"), V(f"v_and_b32 v{GT}, 0x70, v{vL16}"), V(f"v_add_u32 v{GT}, v{vY8}, v{GT}"),
             V(f"v_mul_u32_u24 v{vY8}, {YP//8}, v{vY}"), V(f"v_lshl_add_u32 v{vY}, v{vQ8}, 11, v{GT}"), V(f"v_add_u32 v{vY8}, v{vY8}, v{GT}"),
             V(f"v_and_b32 v{GT}, 8, v{vQ8}"), V(f"v_lshl_add_u32 v{vY8}, v{GT}, 11, v{vY8}"),
             SQ(f"s_cmp_lt_u32 {sW}, 2", "s_cselect_b64 vcc, 0, -1"), V(f"v_cndmask_b32 v175, v{vTA}, v{vTB}, vcc")]
        TF.add(g.cend + 0.2, f)
        f = []
        for k in range(16): f += [ext(XN + k, XR + (k >> 1), k & 1), V(f"v_fma_f32 v{XN+k}, v{XN+k}, v{ST+2*(k>>2)}, v{ST+2*(k>>2)+1}")]
        y8 = [S(f"s_lshr_b32 {t2s}, {sW}, 1"), S(f"s_lshl_b32 {t2s}, {t2s}, 2"), S(f"s_lshl_b32 {t1s}, {sJ}, 15"), S(f"s_add_u32 {t2s}, {t2s}, {t1s}"), S(f"s_add_u32 {t2s}, {t2s}, {sYB}")]
        for i in range(8): y8 += [S(f"s_add_u32 {t1s}, {t2s}, {4096*(512+(i&3)) + YP*(i>>2)}"), VM(f"buffer_load_dword v{G8Y+i}, v{vY8}, {WS}, {t1s} offen sc1", "Y8")]
        TF.add(g.cend + 0.2, y8)
        TF.addsplit(g.cend + 0.2, f, 8)
        t8 = max(g.cend + 0.2 + o['ladd'], o.get('t8', 0))
        g8 = [g.mchk(y8, "Y8", [(G8Y + i, 175) for i in range(8)])]
        R = (4, 6, 5, 7)
        for r in range(4):
            x, b, y, z = GT, GT + 1, G8Y + r, G8Y + 4 + r
            g8.append([ext(x, G8X + (r >> 1), r & 1), ext(b, G8B + (r >> 1), r & 1),
                       V(f"v_lshlrev_b32 v{y}, {sSEL}, v{y}"), V(f"v_lshlrev_b32 v{z}, {sSEL}, v{z}"), V(f"v_and_b32 v{y}, {sMK}, v{y}"), V(f"v_and_b32 v{z}, {sMK}, v{z}"),
                       V(f"v_add_f32 v{y}, v{y}, v{z}"), V(f"v_add_f32 v{z}, v{b}, v{x}"), V(f"v_fma_f32 v{x}, v{x}, v{ST+8}, v{ST+9}"),
                       V(f"v_fmac_f32 v{R[r]}, v{x}, v{y}"), V(f"v_mov_b32 v{r}, v{R[r]}")])
        f = [V(f"v_cmp_gt_u32 vcc, 32, v{vL}"), V(f"v_mov_b32 v{GT}, {OOB}")]
        for r in range(4): f.append(V(f"v_permlane32_swap_b32 v{r}, v{R[r]}"))
        f.append(V(f"v_cndmask_b32 v{vO8}, v{GT}, v{vO8}, vcc"))
        for r in range(4): f += [V(f"v_add_f32 v{r}, v{r}, v{R[r]}"), V(f"v_fma_f32 v{r}, v{r}, {sIA}, v{G8Y+4+r}")]
        f += [V("v_cvt_pk_bf16_f32 v0, v0, v1"), V("v_cvt_pk_bf16_f32 v1, v2, v3"), VM(f"buffer_store_dwordx2 v[0:1], v{vO8}, {OUT}, {sXW} offen")]
        g8.append(f)
        yl = [S(f"s_lshl_b32 {t2s}, {sJ}, 2"), S(f"s_add_u32 {t2s}, {t2s}, {sW}"), S(f"s_lshl_b32 {t2s}, {t2s}, 16"), S(f"s_add_u32 {t2s}, {t2s}, {sYB}")]
        for i in range(8): yl += [S(f"s_add_u32 {t1s}, {t2s}, {4096*(i&3) + YP*(i>>2)}"), VM(f"buffer_load_dwordx2 {v2(YR+2*i)}, v{vY}, {WS}, {t1s} offen sc1", "YL")]
        fe = [(t8, x) for x in g8] + [(o['tyl'], yl), (o['tya'], [g.SS('ya')] + g.mchk(yl, "YL", g.ab(YR, 16)))]
        for i in range(8):
            f = []
            for nt in range(4):
                k = 4 * nt + (i & 3)
                f += [ext(GT + (nt & 1), YR + 2 * i + (nt >> 1), nt & 1), V(f"v_fmac_f32 v{SUM+k}, v{XN+k}, v{GT+(nt&1)}")]
            fe.append((o['tya'], f))
        assert o['tyl'] > g.cend + 0.2
        for t, x in sorted(fe, key=lambda x: x[0]): TF.add(t, x, t + 1.0 if x is yl else 1e9)
        for t, k, x in sorted(ld, key=lambda x: x[0]):
            if k == 'p': g.padd(TL, t, x, raw[x])
            elif k == 'b': TL.addsplit(t, x[:9], 9); TL.addsplit(t, x[9:], 8)
            else: TL.add(t, x, t + 1.0 if k == 'l' or x is l8 else 1e9)
        g.log = []
        ths = [TG, TK, TT, TS, TL, TF]
        run3(e, steps, ths, base=o['base'], log=g.log)
        g.stamp(e, 'own')
        rest = sorted([c for t in ths for c in t.q], key=lambda c: c[0])
        pre = [c for c in rest if c[2][-1][0] == 'vm' and 'load' in c[2][-1][1]]
        for c in pre: e.items(c[2])
        OWN = g.aset(1, 8); own = False
        for c in [c for c in rest if c not in pre] + [None]:
            if not own and (c is None or any(x[0] == 'w' for x in c[2])):
                e.A("s_nop 4"); own = True
                for i in range(16): e.A(f"v_add_f32 v{SUM+i}, v{SUM+i}, v{OWN+i}")
            if c: e.items(c[2])
        g.stamp(e, 'fin')
        for nt in range(4):
            k = SUM + 4 * nt
            for r in range(4): e.A(f"v_mul_f32 v{k+r}, {sIA}, v{k+r}")
            e.A(f"v_cvt_pk_bf16_f32 v{k}, v{k}, v{k+1}"); e.A(f"v_cvt_pk_bf16_f32 v{k+1}, v{k+2}, v{k+3}")
            e.A(f"s_add_u32 {t1s}, {sXO}, {nt*18432}")
            e.vmop(f"buffer_store_dwordx2 {v2(k)}, v{vO}, {OUT}, {t1s} offen")
        g.stamp(e, 'end'); g.stamp_out(e)
        e.A(f"s_or_b32 {t1s}, {sT}, {sJ}"); e.A(f"s_or_b32 {t1s}, {t1s}, {sW}"); e.A(f"s_cmp_lg_u32 {t1s}, 0"); e.A("s_cbranch_scc1 L_end")
        e.A(f"v_mov_b32 v{GT}, {sTAG}"); e.vmop(f"buffer_store_dword v{GT}, v{vF0}, {WS}, 0 offen sc1")

    def build(g):
        e = Em(); g.prologue(e); g.main(e)
        errs = sorted(set(check(e.L, "main") + check(g.ool, "ool")))
        for x in errs: print("HAZARD", x, file=sys.stderr)
        body = e.L + ["L_end:", "s_endpgm"] + g.ool + ["L_codeend:"]
        hdr = ["; @launch grid=(256,1,1) block=(256,1,1) lds=163840", '.amdgcn_target "amdgcn-amd-amdhsa--gfx950"', ".text", f".globl {NAME}", ".p2align 8", f".type {NAME},@function", f"{NAME}:"]
        ftr = ['.section .rodata,"a"', ".p2align 6", f".amdhsa_kernel {NAME}", "  .amdhsa_next_free_vgpr 512", "  .amdhsa_next_free_sgpr 102", "  .amdhsa_accum_offset 256",
               "  .amdhsa_group_segment_fixed_size 0", "  .amdhsa_kernarg_size 112", "  .amdhsa_user_sgpr_count 2", "  .amdhsa_user_sgpr_kernarg_segment_ptr 1",
               "  .amdhsa_system_sgpr_workgroup_id_x 1", ".end_amdhsa_kernel"]
        return "\n".join(hdr + body + ftr) + "\n", errs

if __name__ == "__main__":
    out = sys.argv[1]
    opts = eval("dict(" + (sys.argv[2] if len(sys.argv) > 2 else "") + ")")
    gg = G(**opts); txt, errs = gg.build()
    if opts.get('abl'):
        L = txt.split("\n"); i0 = L.index("s_barrier")
        for pat in opts['abl']: L = L[:i0 + 1] + [x for x in L[i0 + 1:] if not re.search(pat, x)]
        txt = "\n".join(L)
    open(out, "w").write(txt)
    print(len(txt), "bytes", txt.count("\n"), "lines", len(errs), "hazards")
    if opts.get('v'):
        print("iss", {k: round(v, 1) for k, v in gg.iss.items()}); print("loc", [a // 1024 for a in gg.loc]); print(gg.tend, gg.c8end, gg.cend); print(gg.log)
```
